```python
import torch

def _softmax(x, axis=-1):
    return torch.softmax(x, dim=axis)

def _gelu(x):
    return torch.nn.functional.gelu(x, approximate='tanh')

def _silu(x):
    return torch.nn.functional.silu(x)

def _sigmoid(x):
    return torch.sigmoid(x)

def _layernorm(x, axis=-1, eps=1e-05):
    m = x.mean(dim=axis, keepdim=True)
    v = x.var(dim=axis, keepdim=True, unbiased=False)
    return (x - m) / torch.sqrt(v + eps)

def _scatter_add(tgt, idx, src, axis=0):
    return tgt.clone().index_add_(axis, idx, src)

def _segment_sum(src, seg, n):
    out = torch.zeros((n,) + src.shape[1:], dtype=src.dtype)
    return out.index_add_(0, seg, src)

def _pad(x, pw):
    flat = tuple((v for pair in reversed(pw) for v in pair))
    return torch.nn.functional.pad(x, flat)
kernel_name = 'adaLN_cond__spectral_gfnet__glu_gated_bilinear__prompt'

def setup_inputs():

    _w = lambda a: (lambda t: t.to(torch.bfloat16) if t.is_floating_point() else t)(torch.as_tensor(a))

    def _A_setup():
        B, S, D = (1, 2048, 640)
        Df = D // 2 + 1
        return {'x': _w((lambda *s: torch.randn(*s, dtype=torch.bfloat16) * 0.05)(B, S, D)), 'w_r': _w((lambda *s: torch.randn(*s, dtype=torch.bfloat16) * 1.6)(S, Df) * 0.02), 'w_i': _w((lambda *s: torch.randn(*s, dtype=torch.bfloat16) * 1.6)(S, Df) * 0.02)}
    _A_in = _A_setup()

    def _B_setup():
        B, S, D, F = (1, 2048, 640, 1536)
        return {'x': _w((lambda *s: torch.randn(*s, dtype=torch.bfloat16) * 0.05)(B, S, D)), 'w_gate': _w((lambda *s: torch.randn(*s, dtype=torch.bfloat16) * 0.4)(D, F) * D ** (-0.5)), 'w_up': _w((lambda *s: torch.randn(*s, dtype=torch.bfloat16) * 0.4)(D, F) * D ** (-0.5)), 'w_down': _w((lambda *s: torch.randn(*s, dtype=torch.bfloat16) * 0.4)(F, D) * F ** (-0.5))}
    _B_in = _B_setup()
    return {'A_x': _A_in['x'], 'A_w_r': _A_in['w_r'], 'A_w_i': _A_in['w_i'], 'B_x': _B_in['x'], 'B_w_gate': _B_in['w_gate'], 'B_w_up': _B_in['w_up'], 'B_w_down': _B_in['w_down'], 'c': _w((lambda *s: torch.randn(*s, dtype=torch.bfloat16) * 0.1)(1, 640) * 8.0), 'w_mod': _w((lambda *s: torch.randn(*s, dtype=torch.bfloat16) * 0.1)(640, 6 * 640) * 640 ** (-0.5) * 8.0)}

def reference(A_x, A_w_r, A_w_i, B_x, B_w_gate, B_w_up, B_w_down, c, w_mod):

    def _A_ref(x, w_r, w_i):
        B, S, D = x.shape
        X = (lambda x, axes=(-2, -1): torch.fft.rfft2(x.float(), dim=axes))(x, axes=(-2, -1))
        W = w_r + 1j * w_i
        X = X * W
        y = (lambda x, s, axes=(-2, -1): torch.fft.irfft2(x, s=s, dim=axes).to(torch.bfloat16))(X, (S, D), axes=(-2, -1))
        return y

    def _B_ref(x, w_gate, w_up, w_down):
        g = torch.einsum('bsd,df->bsf', x, w_gate)
        u = torch.einsum('bsd,df->bsf', x, w_up)
        h = g * u
        return torch.einsum('bsf,fd->bsd', h, w_down)
    x = A_x
    mod = (_silu(c) @ w_mod).reshape(c.shape[0], 6, 1, -1)
    sa, ca, ga, sb, cb, gb = (mod[:, 0].clone(), mod[:, 1].clone(), mod[:, 2].clone(), mod[:, 3].clone(), mod[:, 4].clone(), mod[:, 5].clone())
    h = _layernorm(x, axis=-1) * (1 + ca) + sa
    x = x + ga * _A_ref(h, A_w_r, A_w_i)
    h = _layernorm(x, axis=-1) * (1 + cb) + sb
    x = x + gb * _B_ref(h, B_w_gate, B_w_up, B_w_down)
    return x
```

```python
import re

def _regs(tok):
    tok = tok.strip()
    tok = re.sub(r'^-', '', tok)
    m = re.match(r'^(?:abs|neg)\((.*)\)$', tok)
    if m: tok = m.group(1)
    tok = tok.strip('|')
    m = re.match(r'^([vsa])(\d+)$', tok)
    if m: return {(m.group(1), int(m.group(2)))}
    m = re.match(r'^([vsa])\[(\d+):(\d+)\]$', tok)
    if m: return {(m.group(1), i) for i in range(int(m.group(2)), int(m.group(3)) + 1)}
    if tok in ('vcc', 'vcc_lo', 'vcc_hi'): return {('vcc', 0)}
    if tok in ('exec', 'exec_lo', 'exec_hi'): return {('exec', 0)}
    if tok == 'm0': return {('m0', 0)}
    return set()

TRANS = ('v_exp_f32', 'v_log_f32', 'v_rcp_f32', 'v_rsq_f32', 'v_sqrt_f32', 'v_sin_f32', 'v_cos_f32', 'v_rcp_iflag_f32')

class Ins:
    __slots__ = ('text', 'op', 'w', 'r', 'kind', 'passes', 'srcc', 'ab', 'dpp', 'states', 'wide_data', 'lds_dma', 'sr')
    def __init__(self, text):
        self.text = text
        t = text.split(';')[0].strip()
        parts = t.split(None, 1)
        op = parts[0]; self.op = op
        rest = parts[1] if len(parts) > 1 else ''
        ops = []; depth = 0; cur = ''
        for ch in rest:
            if ch in '[(': depth += 1
            if ch in '])': depth -= 1
            if ch == ',' and depth == 0: ops.append(cur.strip()); cur = ''
            else: cur += ch
        if cur.strip(): ops.append(cur.strip())
        mods = ''
        if ops:
            last = ops[-1].split(None, 1)
            ops[-1] = last[0]
            mods = last[1] if len(last) > 1 else ''
        R = [_regs(o) for o in ops]
        self.w = set(); self.r = set(); self.kind = 'other'; self.passes = 0; self.srcc = set(); self.ab = set()
        self.dpp = False; self.states = 1; self.wide_data = set(); self.lds_dma = False
        U = lambda l: set().union(*l) if l else set()
        if op == 's_nop':
            self.states = int(ops[0], 0) + 1; self.kind = 'nop'
        elif op.startswith('v_mfma'):
            self.kind = 'mfma'; self.w = R[0]; self.ab = R[1] | R[2]; self.srcc = R[3]; self.r = self.ab | self.srcc
            self.passes = 8 if '32x32' in op else 4
        elif op.startswith('v_'):
            self.kind = 'valu'
            if op.startswith('v_dot'): self.kind = 'dot'
            if any(op.startswith(x) for x in TRANS): self.kind = 'trans'
            self.dpp = '_dpp' in op or 'row_' in mods or 'quad_perm' in mods
            if op.startswith('v_permlane') or op.startswith('v_swap'):
                self.w = R[0] | R[1]; self.r = R[0] | R[1]
            elif op.startswith('v_cmp'):
                self.w = R[0]; self.r = U(R[1:])
                if op.startswith('v_cmpx'): self.w |= {('exec', 0)}
            elif re.match(r'v_(add|sub|subrev)_co_', op):
                self.w = R[0] | R[1]; self.r = U(R[2:])
            elif re.match(r'v_(addc|subb|subbrev)_co_', op):
                self.w = R[0] | R[1]; self.r = U(R[2:])
            else:
                self.w = R[0]; self.r = U(R[1:])
                if op.startswith(('v_fmac', 'v_dot2c', 'v_writelane')) or self.dpp: self.r |= R[0]
                if op.startswith('v_cndmask') and len(ops) == 3: self.r |= {('vcc', 0)}
        elif op.startswith('ds_read') or op.startswith('ds_bpermute') or op.startswith('ds_swizzle'):
            self.kind = 'ds'; self.w = R[0]; self.r = U(R[1:])
        elif op.startswith('ds_'):
            self.kind = 'ds'; self.r = U(R)
        elif op.startswith('buffer_load') or op.startswith('global_load'):
            self.kind = 'vmem'
            if ' lds' in (' ' + mods) or '_lds_' in op:
                self.r = U(R) | {('m0', 0)}; self.lds_dma = True
            else:
                self.w = R[0]; self.r = U(R[1:])
                if 'd16' in op: self.r |= R[0]
        elif op.startswith('buffer_store') or op.startswith('buffer_atomic'):
            self.kind = 'vmem'; self.r = U(R)
            if 'x3' in op or 'x4' in op: self.wide_data = R[0]
        elif op.startswith('global_store'):
            self.kind = 'vmem'; self.r = U(R)
            if 'x3' in op or 'x4' in op: self.wide_data = R[1]
        elif op.startswith('s_'):
            self.kind = 'salu'
            if op.startswith(('s_cmp', 's_cbranch', 's_branch', 's_waitcnt', 's_barrier', 's_sleep', 's_endpgm', 's_setprio', 's_bitcmp')):
                self.r = U(R)
            else:
                self.w = R[0] if R else set(); self.r = U(R[1:])
                if 'saveexec' in op: self.w |= {('exec', 0)}
        else:
            raise ValueError('unknown op ' + text)

VAL = ('valu', 'trans', 'dot')
def need(p, c):
    n = 0
    pv = {x for x in p.w if x[0] in 'va' and x[0] != 'vcc'}
    pv = {x for x in p.w if x[0] in ('v', 'a')}
    ps = {x for x in p.w if x[0] in ('s', 'vcc')}
    if p.kind in VAL:
        if c.kind == 'mfma' and pv & c.r: n = max(n, 3 if p.kind == 'dot' else 2)
        if c.kind in VAL:
            if c.dpp and pv & c.r: n = max(n, 2)
            if c.op.startswith('v_permlane') and pv & c.r: n = max(n, 2)
            if c.op.startswith(('v_readlane', 'v_readfirstlane')) and pv & c.r: n = max(n, 1)
            if ps & c.r: n = max(n, 4 if c.op.startswith(('v_readlane', 'v_writelane')) else 2)
            if p.kind == 'trans' and c.kind != 'trans' and pv & c.r: n = max(n, 1)
            if p.kind == 'trans' and c.kind == 'trans' and pv & c.r: n = max(n, 1)
        if p.kind == 'dot' and pv & (c.r | c.w):
            if not (c.op == p.op): n = max(n, 3)
            else: n = max(n, 3)
        if c.kind == 'vmem' and ps & c.r: n = max(n, 5)
        if c.kind == 'salu' and ps & c.r: n = max(n, 1)
        if ('exec', 0) in p.w: n = max(n, 5)
    if p.kind == 'mfma':
        P = p.passes
        if c.kind == 'mfma':
            if p.w & c.ab: n = max(n, {4: 8, 8: 12}[P])
            if p.w & c.srcc:
                if not (p.w == c.srcc and p.passes == c.passes): n = max(n, {4: 6, 8: 10}[P])
            elif p.w & c.w: n = max(n, {4: 6, 8: 10}[P])
        elif c.kind in VAL or c.kind in ('vmem', 'ds'):
            if p.w & (c.r | c.w): n = max(n, {4: 8, 8: 12}[P])
            if c.kind in VAL and p.srcc & c.w: n = max(n, {4: 3, 8: 7}[P])
    if p.kind == 'salu' and ('m0', 0) in p.w and c.lds_dma: n = max(n, 1)
    if p.wide_data and p.wide_data & c.w: n = max(n, 2 if c.kind in VAL else 1)
    return n

class Asm:
    def __init__(self):
        self.lines = []
        self.hists = [[]]
        self.pending = {}
        self.defined = set()
        self.nops = 0
        self.ninst = 0
    def raw(self, s): self.lines.append(s)
    def label(self, name):
        self.lines.append(name + ':')
        self.defined.add(name)
        self.hists += self.pending.pop(name, [])
    def comment(self, s): self.lines.append('    ; ' + s)
    def _push(self, ins):
        for h in self.hists:
            h.append(ins)
            if len(h) > 40: del h[:-30]
        uniq = []
        for h in self.hists:
            if not any(len(h) >= 22 and len(u) >= 22 and all(x is y for x, y in zip(h[-22:], u[-22:])) for u in uniq): uniq.append(h)
        self.hists = uniq
        self.lines.append('    ' + ins.text); self.ninst += 1
    def __call__(self, text):
        for t in text.split('\n'):
            t = t.strip()
            if not t: continue
            if t.startswith(';'): self.lines.append('    ' + t); continue
            if t.endswith(':'): self.label(t[:-1]); continue
            ins = Ins(t)
            req = 0
            for h in self.hists:
                dist = 0
                for p in reversed(h):
                    k = need(p, ins)
                    if k - dist > req: req = k - dist
                    dist += p.states
                    if dist >= 20: break
            isbr = ins.op.startswith('s_cbranch') or ins.op == 's_branch'
            tgt = t.split(';')[0].split()[1] if isbr else None
            if isbr and tgt in self.defined:
                for h in self.hists:
                    dist = 1
                    for p in reversed(h):
                        k = {'mfma': 12 if p.passes == 8 else 8, 'valu': 5, 'trans': 5, 'dot': 5}.get(p.kind, 2 if p.wide_data else 1 if ('m0', 0) in p.w else 0)
                        if k - dist > req: req = k - dist
                        dist += p.states
                        if dist >= 20: break
            while req > 0:
                k = min(req, 16)
                self._push(Ins(f's_nop {k-1}')); self.nops += k
                req -= k
            self._push(ins)
            if isbr and tgt not in self.defined:
                self.pending.setdefault(tgt, []).extend([list(h) for h in self.hists])
            if ins.op in ('s_branch', 's_endpgm'):
                self.hists = [[]]
    def text(self): return '\n'.join(self.lines) + '\n'
```

```python
import numpy as np
def bf16_bits(x):
    x = np.ascontiguousarray(x, dtype=np.float32)
    u = x.view(np.uint32)
    return (((u + 0x7FFF + ((u >> 16) & 1)) >> 16) & 0xFFFF).astype(np.uint32)
def cosr(num, den):
    num = np.asarray(num) % den
    v = np.cos(2 * np.pi * num / den)
    v[np.abs(v) < 1e-12] = 0.0
    return v
def sinr(num, den):
    num = np.asarray(num) % den
    v = np.sin(2 * np.pi * num / den)
    v[np.abs(v) < 1e-12] = 0.0
    return v
L = np.arange(64); G = L // 16; N = L % 16
def frag_bf16(fn):
    vals = np.stack([np.asarray(fn(G, N, jj), dtype=np.float64) + np.zeros(64) for jj in range(8)], 1)
    b = bf16_bits(vals)
    return (b[:, 0::2] | (b[:, 1::2] << 16)).astype(np.uint32)
def frag_f32(fn):
    vals = np.stack([np.asarray(fn(G, N, j), dtype=np.float64) + np.zeros(64) for j in range(4)], 1)
    return vals.astype(np.float32).view(np.uint32)
def build():
    T = {}
    T['B1re'] = frag_bf16(lambda g, n, jj: cosr((5 * g + jj) * n, 20) * (jj < 5))
    T['B1im'] = frag_bf16(lambda g, n, jj: -sinr((5 * g + jj) * n, 20) * (jj < 5))
    for t in range(2):
        T[f'TW1c{t}'] = frag_f32(lambda g, n, j: cosr((8 * g + 2 * j + t) * n, 640))
    for t in range(2):
        T[f'TW1s{t}'] = frag_f32(lambda g, n, j: sinr((8 * g + 2 * j + t) * n, 640))
    T['S2Clo'] = frag_bf16(lambda g, m, jj: cosr((8 * g + jj) * m, 32))
    T['S2Slo'] = frag_bf16(lambda g, m, jj: sinr((8 * g + jj) * m, 32))
    T['S2nSlo'] = frag_bf16(lambda g, m, jj: -sinr((8 * g + jj) * m, 32))
    T['S2Chi'] = frag_bf16(lambda g, m, jj: cosr((8 * g + jj) * (m + 16), 32))
    T['S2Shi'] = frag_bf16(lambda g, m, jj: sinr((8 * g + jj) * (m + 16), 32))
    T['S2nChi'] = frag_bf16(lambda g, m, jj: -cosr((8 * g + jj) * (m + 16), 32))
    def rot(num, den, ri, rip, sg):
        c = cosr(num, den); s = sinr(num, den) * sg
        return np.where(ri == rip, c, np.where(ri == 0, -s, s))
    for sg, nm in ((-1, 'F16f'), (1, 'F16i')):
        for mt in range(2):
            T[f'{nm}{mt}'] = frag_bf16(lambda g, m, jj: rot((8 * mt + m // 2) * (4 * g + jj // 2), 16, m % 2, jj % 2, sg))
    for t in range(2):
        for tp in range(2):
            for ri in range(2):
                T[f'I1_{t}{tp}{ri}'] = frag_bf16(lambda g, n, jj: rot((2 * n + tp) * (16 * t + 4 * g + jj // 2), 32, ri + 0 * n, jj % 2, 1) * (-1 if (t == 1 and jj % 2 == 1) else 1))
    wgt = np.array([1] + [2] * 9 + [1] + [0] * 5) / (640.0 * 2048.0)
    for tp in range(2):
        T[f'TW3c{tp}'] = frag_f32(lambda g, n, j: cosr((2 * n + tp) * (4 * g + j), 640) * wgt[4 * g + j])
    for tp in range(2):
        T[f'TW3s{tp}'] = frag_f32(lambda g, n, j: sinr((2 * n + tp) * (4 * g + j), 640) * wgt[4 * g + j])
    def i2(q, g, jj):
        b = 4 * g + jj // 2
        v = cosr(q * b, 20) if jj % 2 == 0 else -sinr(q * b, 20)
        return v * (b <= 10)
    T['I2_0'] = frag_bf16(lambda g, m, jj: i2(5 * (m // 4) + m % 4, g, jj))
    T['I2_1'] = frag_bf16(lambda g, m, jj: i2(5 * (m // 4) + 4, g, jj) * (m % 4 == 0))
    for beta in range(16):
        for mt in range(2):
            T[f'Mf{beta}_{mt}'] = frag_bf16(lambda g, m, jj: rot((4 * g + jj // 2) * (beta + 16 * (8 * mt + m // 2)), 256, m % 2, jj % 2, -1))
        for mt in range(2):
            T[f'Mi{beta}_{mt}'] = frag_bf16(lambda g, m, jj: rot((8 * mt + m // 2) * (beta + 16 * (8 * (jj // 4) + 2 * g + (jj // 2) % 2)), 256, m % 2, jj % 2, 1))
    return T
if __name__ == '__main__':
    T = build(); print(len(T), list(T)[:40])
```

```python
import sys, os
sys.path.insert(0, os.path.dirname(os.path.abspath(__file__)))
import numpy as np
from asmlib import Asm
import tables

NAME = 'adaLN_cond__spectral_gfnet__glu_gated_bilinear__prompt'
KN = NAME + '_kernel'

EPOCH = 0x0
MODG = 0x1000
FH2 = 0x8000
FHH = 0x9000
STAMP = 0x10000
XP = 1408
X1 = 0x100000
X2 = 0x400000
H2 = 0x700000
XR = 0xA00000
HH = 0xD00000
WS_SIZE = 0x1400000
POLL_LIMIT = 200000

L_MOD = 0
L_FFT = 8192
L_W = 40960
LDS_BYTES = 163840

def vr(a, n=1): return f'v{a}' if n == 1 else f'v[{a}:{a+n-1}]'
def sr(a, n=1): return f's{a}' if n == 1 else f's[{a}:{a+n-1}]'

class K:
    def __init__(self, stamps=False, opts=None):
        self.a = Asm(); self.stamps = stamps; self.o = opts or {}
        self.vm = []
        self.nstamp = 0
        self.T = tables.build()
        names = list(self.T)
        self.fidx = {}
        for i, n in enumerate(names[:30]): self.fidx[n] = i
        for i, n in enumerate(names[30:]): self.fidx[n] = 32 + i
        self.uid = 0
    def lab(self, p):
        self.uid += 1; return f'L_{p}_{self.uid}'
    def vmem(self, text, tag='x', cond=False):
        self.a(text)
        self.vm.append((tag, cond))
    def wait_vm(self, tag, extra=''):
        idx = max([i for i, (t, c) in enumerate(self.vm) if t == tag], default=None)
        if idx is None:
            if extra: self.a(f's_waitcnt {extra}')
            return
        n = sum(1 for (t, c) in self.vm[idx + 1:] if not c)
        assert n <= 63, n
        self.a(f's_waitcnt vmcnt({n}) {extra}'.strip())
        self.vm = self.vm[idx + 1:]
    def wait_all(self, extra=''):
        self.a(f's_waitcnt vmcnt(0) {extra}'.strip()); self.vm = []
    def tload(self, dst, name, tag='tab', cond=False):
        f = self.fidx[name]
        assert f < 32
        self.vmem(f'global_load_dwordx4 {vr(dst,4)}, v1, {sr(S_TAB + 2*(f//8), 2)} offset:{(f%8)*1024 - 4096}', tag, cond)
    def stamp(self):
        if not self.stamps: return
        i = self.nstamp; self.nstamp += 1
        assert i < 64
        self.a(f's_memrealtime s[96:97]')
        self.a('s_waitcnt lgkmcnt(0)')
        self.a(f'v_writelane_b32 v135, s96, {i}')

S_X, S_WR, S_WI, S_WG, S_WU, S_WD, S_C, S_WM, S_OUT, S_WS = 8, 12, 16, 20, 24, 28, 32, 36, 40, 44
S_TAB = 48
S_TABM = 56
S_TAG = 58
S_W = 59
S_S2 = 60
S_CNT = 61
S_WSEL = 64
WREG = 136

def gen(stamps=False, opts=None):
    k = K(stamps, opts); a = k.a; o = k.o
    a.raw(f'.globl {KN}\n.p2align 8\n.type {KN},@function\n{KN}:')
    a('s_cmp_ge_u32 s2, 256')
    a('s_cbranch_scc1 L_end')
    a('s_load_dwordx16 s[68:83], s[0:1], 0')
    a('s_load_dwordx8 s[84:91], s[0:1], 64')
    a('s_getpc_b64 s[4:5]')
    a.label('L_pc')
    a('v_lshlrev_b32 v20, 6, v0')
    a('v_min_u32 v20, L_end-L_pc, v20')
    k.vmem('global_load_dword v21, v20, s[4:5]', 'warm')
    a(f's_add_u32 s{S_TAB}, s4, tab_data-L_pc+4096')
    a(f's_addc_u32 s{S_TAB+1}, s5, 0')
    for i in range(1, 4):
        a(f's_add_u32 s{S_TAB+2*i}, s{S_TAB}, {8192*i}')
        a(f's_addc_u32 s{S_TAB+2*i+1}, s{S_TAB+1}, 0')
    a('v_lshrrev_b32 v22, 6, v0')
    a(f'v_readfirstlane_b32 s{S_W}, v22')
    a('v_mov_b32 v23, v0')
    a('v_and_b32 v0, 63, v0')
    a('v_lshlrev_b32 v1, 4, v0')
    a('v_lshrrev_b32 v2, 4, v0')
    a('v_and_b32 v3, 15, v0')
    if stamps: a('v_mov_b32 v135, 0')
    a(f's_mov_b32 s{S_S2}, s2')
    a(f's_mov_b32 s{S_CNT}, 0')
    a(f's_lshl_b32 s3, s{S_W}, 13')
    a(f's_add_u32 s3, s3, {32*1024}')
    a(f's_add_u32 s{S_TABM}, s{S_TAB}, s3')
    a(f's_addc_u32 s{S_TABM+1}, s{S_TAB+1}, 0')
    a('v_mul_u32_u24 v4, 320, v2')
    a('v_lshl_add_u32 v4, v3, 2, v4')
    a('v_lshlrev_b32 v5, 1, v4')
    a('v_lshrrev_b32 v24, 1, v23')
    a('v_lshlrev_b32 v25, 1, v24')
    a('v_mul_u32_u24 v24, 7680, v24')
    a('v_and_b32 v26, 1, v23')
    a('v_lshl_add_u32 v24, v26, 4, v24')
    a('s_and_b32 s92, s2, 7')
    a('s_lshr_b32 s93, s2, 3')
    a('s_mul_i32 s94, s92, 30')
    a('s_add_u32 s94, s94, s93')
    a('s_cmp_lt_u32 s2, 240')
    a('s_cselect_b32 s94, s94, s2')
    a('s_waitcnt lgkmcnt(0)')
    def srd(dst, src, size):
        a(f's_mov_b32 s{dst}, s{src}'); a(f's_mov_b32 s{dst+1}, s{src+1}')
        a(f's_mov_b32 s{dst+2}, {size}'); a(f's_mov_b32 s{dst+3}, 0x20000')
    srd(S_C, 82, 1280); srd(S_WM, 84, 640 * 7680)
    a(f's_load_dword s{S_TAG}, s[90:91], {EPOCH}')
    k.stamp()
    for i in range(3):
        k.vmem(f'buffer_load_ushort v{27+i}, v25, {sr(S_C,4)}, 0 offen offset:{512*i}', 'wm')
    a('s_lshl_b32 s95, s94, 5')
    a('s_cmp_lt_u32 s2, 240')
    a('s_cselect_b32 s95, s95, 0')
    for i in range(3):
        k.vmem(f'buffer_load_dwordx4 {vr(32+4*i,4)}, v24, {sr(S_WM,4)}, s95 offen', 'wm')
        if i < 2: a(f's_add_u32 s95, s95, {256*7680}')
    srd(S_X, 68, 2048 * 1280); srd(S_WS, 90, WS_SIZE)
    a(f's_lshl_b32 s3, s{S_W}, 8'); a(f's_add_u32 s3, s3, s{S_S2}'); a('s_mul_i32 s3, s3, 1280')
    for j in range(5):
        k.vmem(f'buffer_load_dword v{10+j}, v4, {sr(S_X,4)}, s3 offen offset:{64*j}', 'x')
    srd(S_WR, 70, 2048 * 642); srd(S_WI, 72, 2048 * 642); srd(S_WG, 76, 640 * 3072); srd(S_WU, 78, 640 * 3072)
    srd(S_WD, 80, 1536 * 1280); srd(S_OUT, 86, 2048 * 1280)
    a(f's_mov_b32 s3, {512*XP}')
    a('v_mul_lo_u32 v6, v2, s3')
    a('v_lshl_add_u32 v6, v3, 2, v6')
    a(f's_lshl_b32 s3, s{S_W}, 6')
    a('v_add_u32 v6, s3, v6')
    a(f'v_add_u32 v7, {256*XP}, v6')
    a(f's_mul_i32 s3, s{S_W}, {2*XP}')
    a(f'v_mul_u32_u24 v9, {32*XP}, v2')
    a('v_lshl_add_u32 v8, v3, 2, s3')
    a('v_add_u32 v9, v9, v8')
    a(f'v_mul_u32_u24 v22, {64*XP}, v2')
    a('v_add_u32 v8, v8, v22')
    S_X1S, S_X2S = 62, 63
    a(f's_mul_i32 s3, s{S_S2}, {XP}')
    a(f's_add_u32 s{S_X1S}, s3, {X1}'); a(f's_add_u32 s{S_X2S}, s3, {X2}')
    S_P2B = 6
    a(f's_mul_i32 s{S_P2B}, s92, {256*XP}'); a('s_lshl_b32 s3, s93, 6'); a(f's_add_u32 s{S_P2B}, s{S_P2B}, s3')
    S_K1, S_CT = 92, 93
    a('v_mov_b32 v22, -1')
    def sstage_stores(regs, sbase, tag):
        for t in range(2):
            for e in range(2):
                k.vmem(f'buffer_store_dword v{regs[t][e]}, v{6+e}, {sr(S_WS,4)}, s{sbase} offen offset:{512*t} sc1', tag)
        l = k.lab('s3')
        a(f's_cmp_ge_u32 s{S_W}, 5'); a(f's_cbranch_scc1 {l}')
        for e in range(2):
            k.vmem(f'buffer_store_dword v{regs[2][e]}, v{6+e}, {sr(S_WS,4)}, s{sbase} offen offset:1024 sc1', tag, cond=True)
        a.label(l)
    sstage_stores([[22, 22]] * 3, S_X1S, 'fill')
    def p2_stores(regs, tag):
        for mt in range(2):
            for e in range(2):
                a(f's_add_u32 s3, s{S_P2B}, {X2 + (8*mt+e)*16*XP}')
                for ue in range(2):
                    k.vmem(f'buffer_store_dword v{regs[ue][mt][e]}, v9, {sr(S_WS,4)}, s3 offen offset:{XP*ue} sc1', tag, cond=True)
    l = k.lab('nofill')
    a(f's_cmp_ge_u32 s{S_CT}, 21'); a(f's_cbranch_scc1 {l}')
    p2_stores([[[22, 22]] * 2] * 2, 'fill')
    a.label(l)
    TB1, TTW, TS2 = 48, 56, 72
    for i, n in enumerate(['B1re', 'B1im']): k.tload(TB1 + 4*i, n)
    for i, n in enumerate(['TW1c0', 'TW1c1', 'TW1s0', 'TW1s1']): k.tload(TTW + 4*i, n)
    for i, n in enumerate(['S2Clo', 'S2Slo', 'S2nSlo', 'S2Chi', 'S2Shi', 'S2nChi']): k.tload(TS2 + 4*i, n)

    S_G, S_NT = 7, 98
    a('s_and_b32 s3, s92, 3'); a('s_lshl_b32 s3, s3, 2'); a(f's_lshr_b32 s{S_G}, s93, 3'); a(f's_add_u32 s{S_G}, s{S_G}, s3')
    a('s_lshr_b32 s3, s92, 2'); a('s_lshl_b32 s3, s3, 3'); a(f's_and_b32 s{S_NT}, s93, 7'); a(f's_add_u32 s{S_NT}, s{S_NT}, s3')
    a(f's_cmp_lt_u32 s{S_W}, 4')
    a(f's_cselect_b32 s{S_WSEL}, s{S_WG}, s{S_WU}'); a(f's_cselect_b32 s{S_WSEL+1}, s{S_WG+1}, s{S_WU+1}')
    a(f's_mov_b32 s{S_WSEL+2}, {640*3072}'); a(f's_mov_b32 s{S_WSEL+3}, 0x20000')
    a('s_cselect_b32 s3, 0, 1')
    for c in range(3):
        a(f'v_add_u32 v44, {64*c}, v0')
        a('v_mul_u32_u24 v45, 43691, v44'); a('v_lshrrev_b32 v45, 19, v45')
        a('v_mul_u32_u24 v46, 12, v45'); a('v_sub_u32 v46, v44, v46')
        a('v_lshrrev_b32 v47, 2, v45'); a('v_and_b32 v47, 2, v47')
        a('v_xor_b32 v46, v46, v47'); a('v_xor_b32 v46, s3, v46')
        a('v_mul_u32_u24 v45, 3072, v45')
        a(f'v_lshl_add_u32 v{15+c}, v46, 4, v45')
        if c: a(f'v_subrev_u32 v{15+c}, {1024*c}, v{15+c}')
    def w1_dma(r):
        a(f's_bfe_u32 s68, s{S_W}, 0x10001'); a('s_mul_i32 s68, s68, 320')
        a(f's_and_b32 s69, s{S_W}, 1'); a('s_mul_i32 s69, s69, 80'); a('s_add_u32 s68, s68, s69')
        a(f's_add_u32 s68, s68, {160*r}'); a('s_mul_i32 s68, s68, 3072')
        a(f's_mul_i32 s69, s{S_NT}, 192'); a('s_add_u32 s68, s68, s69')
        a(f's_mul_i32 s69, s{S_W}, 15360'); a(f's_add_u32 s69, s69, {L_W}')
        for per in range(5):
            a('s_mov_b32 m0, s69')
            for c in range(3):
                k.vmem(f'buffer_load_dwordx4 v{15+c}, {sr(S_WSEL,4)}, s68 offen offset:{1024*c} lds', 'w1')
            if per < 4:
                a(f's_add_u32 s68, s68, {16*3072}'); a('s_add_u32 s69, s69, 3072')
    def w1_tr(r, t0):
        A0, A1, A2, t3, t4, t5, t6 = range(t0, t0 + 7)
        a(f's_and_b32 s68, s{S_W}, 3'); a('s_mul_i32 s68, s68, 3')
        a(f's_lshr_b32 s69, s{S_W}, 2'); a(f's_mul_i32 s69, s69, {160*192}'); a(f's_add_u32 s69, s69, {L_W}')
        a(f'v_bfe_u32 v{t3}, v0, 2, 2')
        a(f'v_lshl_add_u32 v{t3}, v2, 3, v{t3}')
        a(f'v_mul_u32_u24 v{t3}, 192, v{t3}')
        a(f'v_add_u32 v{t3}, s69, v{t3}')
        a(f'v_and_b32 v{t4}, 1, v0'); a(f'v_lshl_add_u32 v{t3}, v{t4}, 3, v{t3}')
        a(f'v_and_b32 v{t4}, 1, v2'); a(f'v_lshlrev_b32 v{t4}, 1, v{t4}')
        a(f'v_bfe_u32 v{t5}, v0, 1, 1')
        a(f'v_add_u32 v{t6}, s68, v{t5}'); a(f'v_xor_b32 v{t6}, v{t6}, v{t4}')
        a(f'v_lshl_add_u32 v{A0}, v{t6}, 4, v{t3}')
        a(f'v_xor_b32 v{t6}, 1, v{t6}'); a(f'v_lshl_add_u32 v{A1}, v{t6}, 4, v{t3}'); a(f'v_add_u32 v{A1}, 61440, v{A1}')
        a('s_add_u32 s68, s68, 2')
        a(f'v_xor_b32 v{t6}, s68, v{t4}'); a(f'v_xor_b32 v{t6}, v{t6}, v{t5}')
        a(f'v_lshl_add_u32 v{A2}, v{t6}, 4, v{t3}')
        a(f'v_mul_u32_u24 v{t5}, 61440, v{t5}'); a(f'v_add_u32 v{A2}, v{A2}, v{t5}')
        for ksl in range(5):
            for T in range(3):
                for half in range(2):
                    d = WREG + ((5*r + ksl)*3 + T)*4 + 2*half
                    a(f'ds_read_b64_tr_b16 {vr(d,2)}, v{t0+T} offset:{(32*ksl + 4*half)*192}')
    if o.get('w1_early', True): w1_dma(0)

    k.wait_vm('wm')
    k.stamp()
    for i in range(3):
        c = 27 + i
        a(f'v_lshlrev_b32 v{c}, 16, v{c}')
        a(f'v_mul_f32 v44, 0xbfb8aa3b, v{c}')
        a('v_exp_f32 v44, v44'); a('v_add_f32 v44, 1.0, v44'); a('v_rcp_f32 v44, v44')
        a(f'v_mul_f32 v44, v44, v{c}')
        a(f'v_cvt_pk_bf16_f32 v{c}, v44, 0')
        a(f'v_lshlrev_b32 v{96+i}, 16, v{c}')
    ACC = 100
    for i in range(3):
        for q in range(4):
            w = 32 + 4*i + q
            if i == 0:
                a(f'v_dot2_f32_bf16 v{ACC+2*q}, v{w}, v{27}, 0'); a(f'v_dot2_f32_bf16 v{ACC+2*q+1}, v{w}, v{96}, 0')
            else:
                a(f'v_dot2_f32_bf16 v{ACC+2*q}, v{w}, v{27+i}, v{ACC+2*q}'); a(f'v_dot2_f32_bf16 v{ACC+2*q+1}, v{w}, v{96+i}, v{ACC+2*q+1}')
    for j in range(4): a(f'v_permlane32_swap_b32 v{ACC+j}, v{ACC+j+4}')
    for j in range(4): a(f'v_add_f32 v{ACC+j}, v{ACC+j}, v{ACC+j+4}')
    for j in range(2): a(f'v_permlane16_swap_b32 v{ACC+j}, v{ACC+j+2}')
    for j in range(2): a(f'v_add_f32 v{ACC+j}, v{ACC+j}, v{ACC+j+2}')
    for m in ('row_ror:8', 'row_ror:4', 'quad_perm:[2,3,0,1]'):
        for j in range(2): a(f'v_add_f32_dpp v{ACC+j}, v{ACC+j}, v{ACC+j} {m} row_mask:0xf bank_mask:0xf')
    a('v_and_b32 v44, 1, v0'); a('v_lshl_add_u32 v44, v44, 2, v2'); a('v_lshlrev_b32 v44, 3, v44')
    a(f's_lshl_b32 s3, s{S_W}, 6'); a(f's_add_u32 s3, s3, {L_FFT}'); a('v_add_u32 v44, s3, v44')
    a(f'ds_write_b64 v44, {vr(ACC,2)}')
    k.wait_vm('fill', 'lgkmcnt(0)')
    a('s_barrier')
    a(f's_add_u32 s{S_TAG}, s{S_TAG}, 1')
    l = k.lab('p0fin')
    a(f's_cmp_lg_u32 s{S_W}, 0'); a(f's_cbranch_scc1 {l}')
    a('v_lshlrev_b32 v44, 3, v0')
    a(f'ds_read_b64 {vr(ACC,2)}, v44 offset:{L_FFT}')
    a('s_sub_u32 s68, s94, 40'); a('s_cmp_lt_u32 s68, 40'); a('s_cselect_b32 s69, 1.0, 0')
    a('s_sub_u32 s68, s94, 160'); a('s_cmp_lt_u32 s68, 40'); a('s_cselect_b32 s69, 1.0, s69')
    a('s_lshl_b32 s68, s94, 6'); a(f's_add_u32 s68, s68, {MODG}')
    a('s_waitcnt lgkmcnt(0)')
    for j in range(2): a(f'v_add_f32_dpp v{ACC+j}, v{ACC+j}, v{ACC+j} row_ror:8 row_mask:0xf bank_mask:0xf')
    for sw in ('16', '32'):
        for j in range(2): a(f'v_mov_b32 v{ACC+2+j}, v{ACC+j}')
        for j in range(2): a(f'v_permlane{sw}_swap_b32 v{ACC+j}, v{ACC+2+j}')
        for j in range(2): a(f'v_add_f32 v{ACC+j}, v{ACC+j}, v{ACC+2+j}')
    a(f'v_cvt_pk_bf16_f32 v{ACC}, v{ACC}, v{ACC+1}')
    a(f'v_and_b32 v{ACC+1}, 0xffff0000, v{ACC}'); a(f'v_lshlrev_b32 v{ACC}, 16, v{ACC}')
    a(f'v_add_f32 v{ACC}, s69, v{ACC}'); a(f'v_add_f32 v{ACC+1}, s69, v{ACC+1}')
    a(f'v_cvt_pk_bf16_f32 v{ACC}, v{ACC}, v{ACC+1}')
    a(f'v_mov_b32 v{ACC+1}, s{S_TAG}')
    a('s_mov_b64 exec, 0xff')
    k.vmem(f'buffer_store_dwordx2 {vr(ACC,2)}, v44, {sr(S_WS,4)}, s68 offen sc1', 'st', cond=True)
    a('s_mov_b64 exec, -1')
    a.label(l)
    k.stamp()

    def layernorm(X, t0, t1):
        a(f'v_readfirstlane_b32 s68, v{X}')
        for i in range(10): a(f'v_subrev_f32 v{X+i}, s68, v{X+i}')
        a(f'v_add_f32 v{t0}, v{X}, v{X+1}'); a(f'v_mul_f32 v{t1}, v{X}, v{X}')
        a(f'v_fmac_f32 v{t1}, v{X+1}, v{X+1}')
        for i in range(2, 10):
            a(f'v_add_f32 v{t0}, v{t0}, v{X+i}'); a(f'v_fmac_f32 v{t1}, v{X+i}, v{X+i}')
        for m in ('quad_perm:[1,0,3,2] row_mask:0xf', 'quad_perm:[2,3,0,1] row_mask:0xf', 'row_ror:4 row_mask:0xf', 'row_ror:8 row_mask:0xf',
                  'row_bcast:15 row_mask:0xa', 'row_bcast:31 row_mask:0xc'):
            for t in (t0, t1): a(f'v_add_f32_dpp v{t}, v{t}, v{t} {m} bank_mask:0xf')
        a(f'v_readlane_b32 s68, v{t0}, 63'); a(f'v_readlane_b32 s69, v{t1}, 63')
        inv = '0x3acccccd'
        a(f'v_mov_b32 v{t0}, {inv}')
        a(f'v_mul_f32 v{t1}, s69, v{t0}'); a(f'v_mul_f32 v{t0}, s68, v{t0}')
        a(f'v_fma_f32 v{t1}, -v{t0}, v{t0}, v{t1}')
        a(f'v_max_f32 v{t1}, 0, v{t1}'); a(f'v_add_f32 v{t1}, 0x3727c5ac, v{t1}')
        a(f'v_rsq_f32 v{t1}, v{t1}')
        a(f'v_mul_f32 v{t0}, v{t0}, v{t1}')
        for i in range(10): a(f'v_fma_f32 v{X+i}, v{X+i}, v{t1}, -v{t0}')
    def unpack(dst_lo, dst_hi, src):
        a(f'v_lshlrev_b32 v{dst_lo}, 16, v{src}'); a(f'v_and_b32 v{dst_hi}, 0xffff0000, v{src}')
    def ematrix(dst, inv, t0):
        t1, t2, t3 = t0 + 1, t0 + 2, t0 + 3
        for e in range(2):
            a(f'v_lshrrev_b32 v{t0}, 1, v3'); a(f'v_lshl_add_u32 v{t1}, v2, 1, {e}')
            kk, ss = (t1, t0) if inv else (t0, t1)
            a(f'v_lshl_add_u32 v{ss}, v{ss}, 8, s{S_S2}')
            a(f'v_mul_u32_u24 v{t0}, v{kk}, v{ss}')
            a(f'v_and_b32 v{t1}, 1, v3')
            a(f'v_mul_u32_u24 v{t1}, {1536 if inv else 512}, v{t1}')
            a(f'v_add_u32 v{t0}, v{t0}, v{t1}'); a(f'v_and_b32 v{t0}, 2047, v{t0}')
            a(f'v_cvt_f32_u32 v{t0}, v{t0}'); a(f'v_mul_f32 v{t0}, 0x3a000000, v{t0}')
            a(f'v_cos_f32 v{t2}, v{t0}'); a(f'v_sin_f32 v{t3}, v{t0}')
            a(f'v_cvt_pk_bf16_f32 v{dst+e}, v{t2}, {"-" if inv else ""}v{t3}')
    def poll_begin(name):
        l = k.lab(name); a.label(l); return l
    def poll_end(l, vcc_nonzero_means_retry=True):
        ok = k.lab('ok')
        a(f's_cbranch_vccz {ok}')
        a(f's_add_u32 s{S_CNT}, s{S_CNT}, 1'); a(f's_cmp_gt_u32 s{S_CNT}, {POLL_LIMIT}'); a('s_cbranch_scc1 L_end')
        a(f's_sleep {o.get("sleep", 2)}')
        a(f's_branch {l}')
        a.label(ok)

    XF = 100
    k.wait_vm('x')
    for j in range(5): unpack(XF + 2*j, XF + 2*j + 1, 10 + j)
    layernorm(XF, 44, 45)
    for j in range(5):
        a(f'v_cvt_pk_bf16_f32 v{XF+2*j}, v{XF+2*j}, 0'); a(f'v_cvt_pk_bf16_f32 v{XF+2*j+1}, 0, v{XF+2*j+1}')
    EM = 18
    ematrix(EM, False, 44)
    P1P = 672
    LA_LO, LA_HI, LA_RD = 96, 97, 98
    a(f's_lshr_b32 s68, s{S_W}, 1'); a(f's_mul_i32 s68, s68, {P1P*4}'); a(f's_and_b32 s69, s{S_W}, 1'); a('s_lshl_b32 s69, s69, 2')
    a('s_add_u32 s68, s68, s69'); a(f's_add_u32 s68, s68, {L_FFT + 1024}')
    a(f'v_add_u32 v{LA_LO}, s68, v5')
    a(f's_add_u32 s69, s68, {520*4}'); a(f'v_sub_u32 v{LA_HI}, s69, v5')
    a(f'v_lshl_add_u32 v44, v3, 3, s68'); a('v_mov_b32 v45, 0')
    a(f'ds_write_b32 v44, v45 offset:{640*4}')
    a(f'v_mul_u32_u24 v{LA_RD}, {P1P*4}, v2'); a(f'v_lshl_add_u32 v{LA_RD}, v3, 3, v{LA_RD}')
    a(f's_lshl_b32 s68, s{S_W}, 7'); a(f's_add_u32 s68, s68, {L_FFT + 1024}'); a(f'v_add_u32 v{LA_RD}, s68, v{LA_RD}')
    AF = 24
    a(f'v_mov_b32 v{AF+3}, 0'); a(f'v_mov_b32 v{AF+7}, 0')
    if o.get('pre0'): a(f's_sleep {o["pre0"]}')
    k.stamp()
    MG = 110
    a(f's_mov_b32 s70, {MODG}')
    l = poll_begin('pm')
    for j in range(5):
        k.vmem(f'buffer_load_dwordx2 {vr(MG+2*j,2)}, v5, {sr(S_WS,4)}, s70 offen offset:{128*j} sc1')
        k.vmem(f'buffer_load_dwordx2 {vr(MG+10+2*j,2)}, v5, {sr(S_WS,4)}, s70 offen offset:{2560+128*j} sc1')
    k.wait_all()
    tags = [MG + 2*i + 1 for i in range(10)]
    a(f'v_xor_b32 v44, s{S_TAG}, v{tags[0]}')
    for t in tags[1:]: a(f'v_bitop3_b32 v44, v44, v{t}, s{S_TAG} bitop3:0xf6')
    a('v_cmp_ne_u32 vcc, 0, v44')
    poll_end(l)
    k.stamp()
    for j in range(5): unpack(MG + 2*j + 1, MG + 2*j, MG + 2*j) if False else None
    for j in range(5):
        a(f'v_and_b32 v{MG+2*j+1}, 0xffff0000, v{MG+2*j}'); a(f'v_lshlrev_b32 v{MG+2*j}, 16, v{MG+2*j}')
    for j in range(5):
        for t in range(2): a(f'v_dot2_f32_bf16 v{XF+2*j+t}, v{MG+10+2*j}, v{XF+2*j+t}, v{MG+2*j+t}')
    for t in range(2):
        a(f'v_cvt_pk_bf16_f32 v{AF+4*t}, v{XF+t}, v{XF+2+t}'); a(f'v_cvt_pk_bf16_f32 v{AF+4*t+1}, v{XF+4+t}, v{XF+6+t}')
        a(f'v_cvt_pk_bf16_f32 v{AF+4*t+2}, v{XF+8+t}, 0')
    D1 = 32
    for t in range(2):
        for ri in range(2):
            a(f'v_mfma_f32_16x16x32_bf16 {vr(D1+8*ri+4*t,4)}, {vr(AF+4*t,4)}, {vr(TB1+4*ri,4)}, 0')
    WF = 112
    def cmul_pk(ore, oim, re, im, c, s, fwd):
        a(f'v_pk_mul_f32 {vr(ore,2)}, {vr(re,2)}, {vr(c,2)}'); a(f'v_pk_mul_f32 {vr(oim,2)}, {vr(im,2)}, {vr(c,2)}')
        n1 = '' if fwd else ' neg_lo:[1,0,0] neg_hi:[1,0,0]'
        n2 = ' neg_lo:[1,0,0] neg_hi:[1,0,0]' if fwd else ''
        return [f'v_pk_fma_f32 {vr(ore,2)}, {vr(im,2)}, {vr(s,2)}, {vr(ore,2)}{n1}', f'v_pk_fma_f32 {vr(oim,2)}, {vr(re,2)}, {vr(s,2)}, {vr(oim,2)}{n2}']
    TP = 100
    later = []
    for h in range(4): later += cmul_pk(TP + 2*h, TP + 8 + 2*h, D1 + 2*h, D1 + 8 + 2*h, TTW + 2*h, TTW + 8 + 2*h, True)
    for s in later: a(s)
    for ri in range(2):
        for j in range(4): a(f'v_cvt_pk_bf16_f32 v{AF+4*ri+j}, v{TP+8*ri+j}, v{TP+8*ri+4+j}')
    mats = {(0, 0): (0, 1), (0, 1): (2, 0), (1, 0): (3, 4), (1, 1): (4, 5)}
    for st in range(2):
        for h in range(2):
            for ri in range(2):
                d = vr(D1 + 8*h + 4*ri, 4)
                a(f'v_mfma_f32_16x16x32_bf16 {d}, {vr(TS2+4*mats[(h,ri)][st],4)}, {vr(AF+4*st,4)}, {d if st else 0}')
    for h in range(2):
        for j in range(4): a(f'v_cvt_pk_bf16_f32 v{TP+4*h+j}, v{D1+8*h+j}, v{D1+8*h+4+j}')
    a(f'ds_write2_b32 v{LA_LO}, v{TP}, v{TP+1} offset0:0 offset1:40'); a(f'ds_write2_b32 v{LA_LO}, v{TP+2}, v{TP+3} offset0:80 offset1:120')
    a(f'ds_write2_b32 v{LA_HI}, v{TP+4}, v{TP+5} offset0:120 offset1:80'); a(f'ds_write2_b32 v{LA_HI}, v{TP+6}, v{TP+7} offset0:40 offset1:0')
    a('s_waitcnt lgkmcnt(0)'); a('s_barrier')
    for t in range(3): a(f'ds_read_b64 {vr(AF+2*t,2)}, v{LA_RD} offset:{1024*t}')
    for t in range(3):
        a(f's_waitcnt lgkmcnt({2-t})')
        a(f'v_mfma_f32_16x16x16_bf16 {vr(D1+4*t,4)}, {vr(EM,2)}, {vr(AF+2*t,2)}, 0')
    for t in range(3):
        for e in range(2): a(f'v_cvt_pk_bf16_f32 v{TP+2*t+e}, v{D1+4*t+2*e}, v{D1+4*t+2*e+1}')
    sstage_stores([[TP + 2*t, TP + 2*t + 1] for t in range(3)], S_X1S, 'st')
    k.stamp()

    if not o.get('w1_early', True):
        w1_dma(0); k.wait_all(); a('s_barrier')
    w1_tr(0, 24)
    TF, TM = 48, 64
    lnw = k.lab('nw')
    a(f's_cmp_ge_u32 s{S_CT}, 21'); a(f's_cbranch_scc1 {lnw}')
    for i in range(16): a(f'v_mov_b32 v{WF+i}, 0')
    a(f'v_mul_u32_u24 v44, {256*642}, v2'); a('v_lshl_add_u32 v44, v3, 1, v44')
    a(f's_mul_i32 s3, s{S_W}, {16*642}'); a('v_add_u32 v44, s3, v44'); a(f'v_add_u32 v45, {8*642}, v44')
    a(f's_mul_i32 s68, s{S_K1}, 642'); a(f's_lshl_b32 s69, s{S_CT}, 5'); a('s_add_u32 s68, s68, s69')
    for mt in range(2):
        for e in range(2):
            a(f's_add_u32 s3, s68, {(1024*mt + 128*e)*642}')
            for be in range(2):
                i = 4*be + 2*mt + e
                k.vmem(f'buffer_load_short_d16_hi v{WF+i}, v{44+be}, {sr(S_WR,4)}, s3 offen', 'wf', cond=True)
                k.vmem(f'buffer_load_short_d16_hi v{WF+8+i}, v{44+be}, {sr(S_WI,4)}, s3 offen', 'wf', cond=True)
    for i, n in enumerate(['F16f0', 'F16f1', 'F16i0', 'F16i1']): k.tload(TF + 4*i, n, cond=True)
    for i in range(8):
        k.vmem(f'global_load_dwordx4 {vr(TM+4*i,4)}, v1, {sr(S_TABM,2)} offset:{i*1024-4096}', 'tab', cond=True)
    a.label(lnw)
    a(f's_lshl_b32 s3, s{S_W}, 10'); a('v_add_u32 v44, s3, v1')
    a(f's_add_u32 s71, s70, 8192')
    l = poll_begin('pg')
    k.vmem(f'buffer_load_dwordx4 v[32:35], v44, {sr(S_WS,4)}, s70 offen sc1')
    k.vmem(f'buffer_load_dwordx4 v[36:39], v44, {sr(S_WS,4)}, s71 offen sc1')
    k.wait_all()
    a(f'v_xor_b32 v45, s{S_TAG}, v33')
    for t in (35, 37, 39): a(f'v_bitop3_b32 v45, v45, v{t}, s{S_TAG} bitop3:0xf6')
    a('v_cmp_ne_u32 vcc, 0, v45')
    poll_end(l)
    a('v_lshrrev_b32 v44, 1, v44')
    a(f'ds_write2_b32 v44, v32, v34 offset0:0 offset1:1')
    a(f'v_add_u32 v44, 4096, v44')
    a(f'ds_write2_b32 v44, v36, v38 offset0:0 offset1:1')
    a('s_waitcnt lgkmcnt(0)'); a('s_barrier')
    l = k.lab('ep')
    a(f's_or_b32 s3, s2, s{S_W}'); a('s_cmp_lg_u32 s3, 0'); a(f's_cbranch_scc1 {l}')
    a(f'v_mov_b32 v44, {EPOCH}'); a(f'v_mov_b32 v45, s{S_TAG}'); a('s_mov_b64 exec, 1')
    k.vmem(f'buffer_store_dword v45, v44, {sr(S_WS,4)}, 0 offen sc1', 'st', cond=True)
    a('s_mov_b64 exec, -1')
    a.label(l)
    k.stamp()

    lp3 = k.lab('p3')
    a(f's_cmp_ge_u32 s{S_CT}, 21'); a(f's_cbranch_scc1 {lp3}')
    a(f's_lshr_b32 s68, s{S_W}, 1'); a('s_lshl_b32 s68, s68, 8'); a(f's_and_b32 s69, s{S_W}, 1'); a('s_lshl_b32 s69, s69, 3')
    a('s_add_u32 s68, s68, s69'); a(f's_add_u32 s68, s68, {L_FFT}')
    a('v_lshlrev_b32 v96, 11, v2'); a('v_lshl_add_u32 v96, v3, 4, v96'); a('v_add_u32 v96, s68, v96')
    a(f's_lshl_b32 s68, s{S_W}, 11'); a(f's_add_u32 s68, s68, {L_FFT}'); a('v_add_u32 v97, s68, v1')
    for i in range(4): a(f's_add_u32 s{72+i}, s{S_P2B}, {X1 + i*16*XP}')
    if o.get('pre1'): a(f's_sleep {o["pre1"]}')
    BF = 24
    l = poll_begin('p2')
    for i in range(4):
        for ue in range(2):
            k.vmem(f'buffer_load_dword v{BF+4*ue+i}, v8, {sr(S_WS,4)}, s{72+i} offen offset:{XP*ue} sc1')
    k.wait_all()
    a(f'v_max3_u32 v44, v{BF}, v{BF+1}, v{BF+2}'); a(f'v_max3_u32 v45, v{BF+3}, v{BF+4}, v{BF+5}'); a(f'v_max3_u32 v44, v44, v{BF+6}, v{BF+7}')
    a('v_max_u32 v44, v44, v45'); a('v_cmp_eq_u32 vcc, -1, v44')
    poll_end(l)
    k.stamp()
    if o.get('w1r1', 'p2') == 'p2': pass
    D = 32
    PK = 100
    def stage(matf):
        for x in range(2):
            for mt in range(2):
                a(f'v_mfma_f32_16x16x32_bf16 {vr(D+8*x+4*mt,4)}, {vr(matf(x,mt),4)}, {vr(BF+4*x,4)}, 0')
    def exchange(off):
        for mt in range(2):
            for e in range(2):
                for x in range(2):
                    a(f'v_cvt_pk_bf16_f32 v{PK+4*mt+2*e+x}, v{D+8*x+4*mt+2*e}, v{D+8*x+4*mt+2*e+1}')
                a(f'ds_write_b64 v96, {vr(PK+4*mt+2*e,2)} offset:{off + (8*mt+e)*1024}')
        a('s_waitcnt lgkmcnt(0)'); a('s_barrier')
        for x in range(2): a(f'ds_read_b128 {vr(BF+4*x,4)}, v97 offset:{off + 1024*x}')
        a('s_waitcnt lgkmcnt(0)')
    stage(lambda x, mt: TF + 4*mt)
    exchange(0)
    stage(lambda x, mt: TM + 16*x + 4*mt)
    for x in range(2):
        for i in range(4):
            re, im = D + 8*x + 2*i, D + 8*x + 2*i + 1
            wr, wi = WF + 4*x + i, WF + 8 + 4*x + i
            a(f'v_mul_f32 v{PK}, v{re}, v{wr}'); a(f'v_mul_f32 v{PK+1}, v{re}, v{wi}')
            a(f'v_fma_f32 v{PK}, -v{im}, v{wi}, v{PK}'); a(f'v_fmac_f32 v{PK+1}, v{im}, v{wr}')
            a(f'v_cvt_pk_bf16_f32 v{BF+4*x+i}, v{PK}, v{PK+1}')
    stage(lambda x, mt: TM + 16*x + 8 + 4*mt)
    exchange(16384)
    stage(lambda x, mt: TF + 8 + 4*mt)
    for x in range(2):
        for i in range(4): a(f'v_cvt_pk_bf16_f32 v{PK+4*x+i}, v{D+8*x+2*i}, v{D+8*x+2*i+1}')
    p2_stores([[[PK + 4*ue + 2*mt + e for e in range(2)] for mt in range(2)] for ue in range(2)], 'st')
    a.label(lp3)
    k.stamp()

    w1_dma(1)
    TI1, TT3, TI2 = 48, 80, 96
    for t in range(2):
        for tp in range(2):
            for ri in range(2): k.tload(TI1 + 4*(4*t + 2*tp + ri), f'I1_{t}{tp}{ri}')
    for i, n in enumerate(['TW3c0', 'TW3c1', 'TW3s0', 'TW3s1']): k.tload(TT3 + 4*i, n)
    for i in range(2): k.tload(TI2 + 4*i, f'I2_{i}')
    ematrix(EM, True, 44)
    GA, SB, CB = 104, 114, 124
    for base, col in ((GA, 1280), (SB, 1920), (CB, 2560)):
        for j in range(5): a(f'ds_read_b32 v{base+2*j}, v4 offset:{L_MOD + 2*col + 64*j}')
    a('s_waitcnt lgkmcnt(0)')
    for base in (GA, SB, CB):
        for j in range(5):
            a(f'v_and_b32 v{base+2*j+1}, 0xffff0000, v{base+2*j}'); a(f'v_lshlrev_b32 v{base+2*j}, 16, v{base+2*j}')
    P3P = 344
    LW3, LR0, LR1 = 20, 21, 22
    a(f'v_mul_u32_u24 v{LW3}, {2*P3P*4}, v2'); a(f'v_lshl_add_u32 v{LW3}, v3, 2, v{LW3}')
    a(f's_lshl_b32 s68, s{S_W}, 6'); a(f's_add_u32 s68, s68, {L_FFT}'); a(f'v_add_u32 v{LW3}, s68, v{LW3}')
    a(f's_mul_i32 s68, s{S_W}, {P3P*4}'); a(f's_add_u32 s68, s68, {L_FFT}')
    a(f'v_add_u32 v{LR0}, s68, v4'); a(f's_add_u32 s68, s68, {260*4}'); a(f'v_sub_u32 v{LR1}, s68, v4')
    for i in range(4, 6): a(f'v_mov_b32 v{BF+i}, 0')
    if o.get('pre2'): a(f's_sleep {o["pre2"]}')
    k.stamp()
    l = poll_begin('p3')
    for t in range(2):
        for e in range(2):
            k.vmem(f'buffer_load_dword v{BF+2*t+e}, v{6+e}, {sr(S_WS,4)}, s{S_X2S} offen offset:{512*t} sc1')
    l2 = k.lab('t3')
    a(f's_cmp_ge_u32 s{S_W}, 5'); a(f's_cbranch_scc1 {l2}')
    for e in range(2):
        k.vmem(f'buffer_load_dword v{BF+4+e}, v{6+e}, {sr(S_WS,4)}, s{S_X2S} offen offset:1024 sc1', cond=True)
    a.label(l2)
    k.wait_all()
    a(f'v_max3_u32 v44, v{BF}, v{BF+1}, v{BF+2}'); a(f'v_max3_u32 v45, v{BF+3}, v{BF+4}, v{BF+5}')
    a('v_max_u32 v44, v44, v45'); a('v_cmp_eq_u32 vcc, -1, v44')
    poll_end(l)
    k.stamp()
    for t in range(3): a(f'v_mfma_f32_16x16x16_bf16 {vr(D+4*t,4)}, {vr(EM,2)}, {vr(BF+2*t,2)}, 0')
    for t in range(3):
        if t == 2:
            l2 = k.lab('t3'); a(f's_cmp_ge_u32 s{S_W}, 5'); a(f's_cbranch_scc1 {l2}')
        for e in range(2):
            a(f'v_cvt_pk_bf16_f32 v{BF+2*t+e}, v{D+4*t+2*e}, v{D+4*t+2*e+1}')
            a(f'ds_write_b32 v{LW3}, v{BF+2*t+e} offset:{512*t + P3P*4*e}')
    a.label(l2)
    a('s_waitcnt lgkmcnt(0)'); a('s_barrier')
    a(f'ds_read2_b32 {vr(BF,2)}, v{LR0} offset0:0 offset1:20'); a(f'ds_read2_b32 {vr(BF+2,2)}, v{LR0} offset0:40 offset1:60')
    a(f'ds_read2_b32 {vr(BF+4,2)}, v{LR1} offset0:60 offset1:40'); a(f'ds_read2_b32 {vr(BF+6,2)}, v{LR1} offset0:20 offset1:0')
    for t in range(2):
        a(f's_waitcnt lgkmcnt({2-2*t})')
        for tp in range(2):
            for ri in range(2):
                d = vr(D + 8*ri + 4*tp, 4)
                a(f'v_mfma_f32_16x16x32_bf16 {d}, {vr(BF+4*t,4)}, {vr(TI1+4*(4*t+2*tp+ri),4)}, {d if t else 0}')
    UP = 48
    later = []
    for h in range(4): later += cmul_pk(UP + 2*h, UP + 8 + 2*h, D + 2*h, D + 8 + 2*h, TT3 + 2*h, TT3 + 8 + 2*h, False)
    for s in later: a(s)
    for i in range(8): a(f'v_cvt_pk_bf16_f32 v{BF+i}, v{UP+i}, v{UP+8+i}')
    for tp in range(2):
        for qt in range(2):
            a(f'v_mfma_f32_16x16x32_bf16 {vr(D+8*tp+4*qt,4)}, {vr(TI2+4*qt,4)}, {vr(BF+4*tp,4)}, 0')
    XF = 64
    for j in range(5): unpack(XF + 2*j, XF + 2*j + 1, 10 + j)
    a(f's_lshl_b32 s72, s{S_S2}, 3'); a(f's_add_u32 s72, s72, s{S_W}')
    a('s_and_b32 s73, s72, 15'); a('s_lshl_b32 s73, s73, 4')
    for j in range(5):
        a(f'v_add_u32 v{74+j}, {64*j}, v4'); a(f'v_xor_b32 v{74+j}, s73, v{74+j}')
    a('s_mul_i32 s72, s72, 1280'); a(f's_add_u32 s73, s72, {XR}'); a(f's_add_u32 s72, s72, {H2}')
    for j in range(5):
        for t in range(2): a(f'v_fmac_f32 v{XF+2*j+t}, v{GA+2*j+t}, v{D+8*t+j}')
    for j in range(5): a(f'v_cvt_pk_bf16_f32 v{10+j}, v{XF+2*j}, v{XF+2*j+1}')
    for j in range(5): unpack(XF + 2*j, XF + 2*j + 1, 10 + j)
    for j in range(5):
        k.vmem(f'buffer_store_dword v{10+j}, v4, {sr(S_WS,4)}, s73 offen offset:{64*j} sc1', 'st')
    layernorm(XF, 44, 45)
    for i in range(10): a(f'v_fma_f32 v{XF+i}, v{XF+i}, v{CB+i}, v{SB+i}')
    for j in range(5):
        a(f'v_cvt_pk_bf16_f32 v{BF+j}, v{XF+2*j}, v{XF+2*j+1}')
        k.vmem(f'buffer_store_dword v{BF+j}, v{74+j}, {sr(S_WS,4)}, s72 offen sc1', 'st')
    k.stamp()
    w1_tr(1, 32)
    def publish(flagoff_sgpr):
        k.wait_all('lgkmcnt(0)'); a('s_barrier')
        l = k.lab('pub')
        a(f's_cmp_lg_u32 s{S_W}, 0'); a(f's_cbranch_scc1 {l}')
        a(f'v_mov_b32 v44, 0'); a(f'v_mov_b32 v45, s{S_TAG}'); a('s_mov_b64 exec, 1')
        k.vmem(f'buffer_store_dword v45, v44, {sr(S_WS,4)}, s{flagoff_sgpr} offen sc1', 'st', cond=True)
        a('s_mov_b64 exec, -1')
        a.label(l)
    def wait_flags(base_sgpr, pre):
        lw = k.lab('wf')
        a(f's_cmp_lg_u32 s{S_W}, 0'); a(f's_cbranch_scc1 {lw}')
        a('v_lshlrev_b32 v44, 2, v3')
        if pre: a(f's_sleep {pre}')
        l = poll_begin('fl')
        k.vmem(f'buffer_load_dword v45, v44, {sr(S_WS,4)}, s{base_sgpr} offen sc1', cond=True)
        a('s_waitcnt vmcnt(0)')
        a(f'v_cmp_ne_u32 vcc, s{S_TAG}, v45')
        poll_end(l)
        a.label(lw)
        a('s_barrier')
    a(f's_lshr_b32 s68, s{S_S2}, 4'); a('s_lshl_b32 s68, s68, 7'); a(f's_and_b32 s69, s{S_S2}, 15'); a('s_lshl_b32 s69, s69, 2')
    a('s_add_u32 s68, s68, s69'); a(f's_add_u32 s68, s68, {FH2}')
    publish(68)
    k.stamp()

    AD = 24
    a(f's_lshr_b32 s72, s{S_W}, 2')
    a('v_mul_u32_u24 v44, 1280, v3')
    for c in range(4):
        a('s_mul_i32 s68, s72, 10'); a(f's_add_u32 s68, s68, {c}')
        a('s_and_b32 s69, s68, 3'); a('s_lshl_b32 s69, s69, 2')
        a('s_lshr_b32 s68, s68, 2'); a('s_lshl_b32 s68, s68, 8')
        a('v_add_u32 v45, s69, v2'); a('v_xor_b32 v45, v45, v3'); a('v_lshl_add_u32 v45, v45, 4, v44')
        a('s_mul_i32 s69, s72, 20480'); a('s_add_u32 s73, s68, s69'); a(f's_add_u32 s73, s73, {L_W}')
        a(f'v_add_u32 v{AD+c}, s73, v45')
        a('s_sub_u32 s73, s68, s69'); a(f's_add_u32 s73, s73, {L_W + 20480}')
        a(f'v_add_u32 v{AD+4+c}, s73, v45')
    XW, XRD, HO1, HO2, DV = 20, 21, 22, 23, 19
    a(f's_mul_i32 s68, s{S_W}, 3072'); a(f'v_add_u32 v{XW}, s68, v1')
    a(f's_xor_b32 s68, s{S_W}, 4'); a('s_mul_i32 s68, s68, 3072'); a(f'v_add_u32 v{XRD}, s68, v1')
    a(f'v_lshrrev_b32 v44, 1, v2'); a('v_and_b32 v45, 1, v2')
    a(f'v_lshlrev_b32 v{HO1}, 4, v3'); a(f'v_lshl_add_u32 v{HO1}, v45, 3, v{HO1}')
    a(f'v_lshl_add_u32 v{HO2}, v44, 2, v{HO1}'); a(f'v_lshl_add_u32 v{HO1}, v44, 8, v{HO1}')
    a(f's_lshl_b32 s74, s{S_G}, 3'); a('s_add_u32 s74, s74, s72'); a('s_mul_i32 s74, s74, 49152')
    a(f's_mul_i32 s68, s{S_NT}, 3072'); a('s_add_u32 s74, s74, s68'); a(f's_and_b32 s68, s{S_W}, 3'); a('s_mul_i32 s68, s68, 768')
    a('s_add_u32 s74, s74, s68'); a(f's_add_u32 s74, s74, {HH}')
    a(f's_mul_i32 s75, s{S_G}, 163840'); a(f's_mul_i32 s68, s{S_W}, 5120'); a('s_add_u32 s75, s75, s68'); a(f's_add_u32 s75, s75, {H2}')
    a(f's_add_u32 s76, s68, {L_W}')
    a(f's_lshl_b32 s68, s{S_G}, 7'); a(f's_add_u32 s68, s68, {FH2}')
    wait_flags(68, o.get('pre3', 0))
    k.stamp()
    def a_dma(mb):
        slot = mb % 3
        a(f's_add_u32 s68, s75, {mb*40960}'); a(f's_add_u32 m0, s76, {slot*40960}')
        for c in range(4):
            k.vmem(f'buffer_load_dwordx4 v1, {sr(S_WS,4)}, s68 offen offset:{1024*c} sc1 lds', f'a{mb}')
        a(f's_add_u32 s68, s68, 4096'); a(f's_add_u32 m0, s76, {slot*40960 + 4096}')
        k.vmem(f'buffer_load_dwordx4 v1, {sr(S_WS,4)}, s68 offen sc1 lds', f'a{mb}')
    for mb in range(3): a_dma(mb)
    ACCS = [32, 56]
    FR = [80, 88]
    RX = 96
    xoffs = [L_FFT, L_FFT, L_W + 40960, L_W + 81920]
    def epilogue_ops(mb):
        ac = ACCS[mb % 2]; ops = []
        if xoffs[mb] >= 65536 - 3072:
            ops.append([f'v_add_u32 v{DV}, {xoffs[mb]}, v{XRD}'] + [f'ds_read_b128 {vr(RX+4*T,4)}, v{DV} offset:{1024*T}' for T in range(3)])
        else:
            ops.append([f'ds_read_b128 {vr(RX+4*T,4)}, v{XRD} offset:{xoffs[mb]+1024*T}' for T in range(3)])
        ops.append('WAITX')
        ops.append([f'v_pk_add_f32 {vr(ac+2*i,2)}, {vr(ac+2*i,2)}, {vr(RX+2*i,2)}' for i in range(6)])
        ops.append([f'v_permlane32_swap_b32 v{ac+8}, v{ac+10}', f'v_permlane32_swap_b32 v{ac+9}, v{ac+11}',
                    f'v_pk_mul_f32 {vr(ac,2)}, {vr(ac,2)}, {vr(ac+4,2)}', f'v_pk_mul_f32 {vr(ac+2,2)}, {vr(ac+2,2)}, {vr(ac+6,2)}',
                    f'v_pk_mul_f32 {vr(ac+8,2)}, {vr(ac+8,2)}, {vr(ac+10,2)}'])
        ops.append([f'v_cvt_pk_bf16_f32 v{RX}, v{ac}, v{ac+1}', f'v_cvt_pk_bf16_f32 v{RX+1}, v{ac+2}, v{ac+3}', f'v_cvt_pk_bf16_f32 v{RX+2}, v{ac+8}, v{ac+9}',
                    f's_add_u32 s68, s74, {mb*2*49152}'])
        ops.append([('st', f'buffer_store_dwordx2 {vr(RX,2)}, v{HO1}, {sr(S_WS,4)}, s68 offen sc1'),
                    ('st', f'buffer_store_dword v{RX+2}, v{HO2}, {sr(S_WS,4)}, s68 offen offset:512 sc1')])
        return ops
    def emit_group(gp):
        for s in gp:
            if isinstance(s, tuple): k.vmem(s[1], s[0])
            else: a(s)
    for mb in range(4):
        k.wait_vm(f'a{mb}', 'lgkmcnt(0)'); a('s_barrier')
        if mb == 1: a_dma(3)
        if mb > 0:
            d = 40960 if mb < 3 else -81920
            for c in range(8): a(f'v_add_u32 v{AD+c}, {d & 0xffffffff}, v{AD+c}')
        ac = ACCS[mb % 2]
        ep = epilogue_ops(mb - 1) if mb > 0 else []
        def rd(ks):
            for i in range(2): a(f'ds_read_b128 {vr(FR[ks%2]+4*i,4)}, v{AD+4*i+ks%4} offset:{256*(ks//4)}')
        rd(0)
        if ep: emit_group(ep[0])
        for ks in range(10):
            nout = 0
            if ks < 9: rd(ks + 1); nout = 2
            if ks == 0 and ep: nout += 3
            a(f's_waitcnt lgkmcnt({nout})')
            for T in range(3):
                for i in range(2):
                    d = vr(ac + 12*i + 4*T, 4)
                    a(f'v_mfma_f32_16x16x32_bf16 {d}, {vr(WREG+(ks*3+T)*4,4)}, {vr(FR[ks%2]+4*i,4)}, {d if ks else 0}')
            if ep and 1 <= ks <= 4: emit_group(ep[ks + 1])
            if mb == 1 and ks == 4: a('s_barrier')
        if xoffs[mb] >= 65536 - 3072:
            a(f'v_add_u32 v{DV}, {xoffs[mb]}, v{XW}')
            for T in range(3): a(f'ds_write_b128 v{DV}, {vr(ac+12+4*T,4)} offset:{1024*T}')
        else:
            for T in range(3): a(f'ds_write_b128 v{XW}, {vr(ac+12+4*T,4)} offset:{xoffs[mb]+1024*T}')
    a('s_waitcnt lgkmcnt(0)'); a('s_barrier')
    ep = epilogue_ops(3)
    emit_group(ep[0]); a('s_waitcnt lgkmcnt(0)')
    for gp in ep[2:]: emit_group(gp)
    k.stamp()
    a(f's_lshl_b32 s68, s{S_G}, 7'); a(f's_lshl_b32 s69, s{S_NT}, 2'); a('s_add_u32 s68, s68, s69'); a(f's_add_u32 s68, s68, {FHH}')
    publish(68)

    S_R, S_CD = 77, 78
    a(f's_lshl_b32 s{S_R}, s92, 2'); a('s_lshr_b32 s3, s93, 3'); a(f's_add_u32 s{S_R}, s{S_R}, s3'); a(f's_and_b32 s{S_CD}, s93, 7')
    for c in range(5):
        a(f'v_add_u32 v44, {64*c}, v0')
        a('v_mul_u32_u24 v45, 52429, v44'); a('v_lshrrev_b32 v45, 19, v45')
        a('v_mul_u32_u24 v46, 10, v45'); a('v_sub_u32 v46, v44, v46')
        a('v_and_b32 v47, 3, v45')
        a('v_bfe_u32 v44, v45, 2, 2'); a('v_lshl_add_u32 v47, v44, 3, v47')
        a('v_lshrrev_b32 v44, 4, v45'); a('v_lshl_add_u32 v47, v44, 2, v47')
        a('v_mul_u32_u24 v47, 1280, v47')
        a(f'v_lshl_add_u32 v{24+c}, v46, 4, v47')
        if 0 < c < 4: a(f'v_subrev_u32 v{24+c}, {1024*c}, v{24+c}')
    a(f's_mul_i32 s79, s{S_W}, 15360'); a(f's_add_u32 s79, s79, {L_W}')
    a('v_lshrrev_b32 v29, 2, v0'); a('v_mul_u32_u24 v29, 160, v29'); a('v_and_b32 v44, 3, v0'); a('v_lshl_add_u32 v29, v44, 3, v29')
    a('v_add_u32 v29, s79, v29')
    for r in range(2):
        a(f's_mul_i32 s68, s{S_W}, {192*1280}'); a(f's_mul_i32 s69, s{S_CD}, 160'); a('s_add_u32 s68, s68, s69')
        if r: a(f's_add_u32 s68, s68, {96*1280}')
        for per in range(3):
            a(f's_add_u32 m0, s79, {per*5120}')
            for c in range(4):
                k.vmem(f'buffer_load_dwordx4 v{24+c}, {sr(S_WD,4)}, s68 offen offset:{1024*c} lds', 'w2')
            a(f's_add_u32 m0, s79, {per*5120+4096}')
            k.vmem(f'buffer_load_dwordx4 v28, {sr(S_WD,4)}, s68 offen lds', 'w2')
            if per < 2: a(f's_add_u32 s68, s68, {32*1280}')
        k.wait_vm('w2')
        for ksl in range(3):
            for T in range(5):
                for half in range(2):
                    d = WREG + ((3*r + ksl)*5 + T)*4 + 2*half
                    a(f'ds_read_b64_tr_b16 {vr(d,2)}, v29 offset:{(32*ksl + 16*half)*160 + 32*T}')
        a('s_waitcnt lgkmcnt(0)')
    k.stamp()
    AV0, AV1, RW, RR, OV, XV = 20, 21, 22, 23, 24, 25
    a(f's_mul_i32 s68, s{S_W}, 6144'); a(f'v_add_u32 v{AV0}, s68, v1'); a(f'v_add_u32 v{AV1}, 4096, v{AV0}')
    a(f's_mul_i32 s68, s{S_W}, 5120'); a(f's_add_u32 s68, s68, {L_W}'); a(f'v_add_u32 v{RW}, s68, v1')
    a(f's_mul_i32 s80, s{S_R}, {4*49152}'); a(f's_add_u32 s80, s80, {HH}')
    a(f'v_mul_u32_u24 v{XV}, 1280, v3'); a(f'v_lshl_add_u32 v{XV}, v2, 3, v{XV}')
    a('v_and_b32 v44, 7, v3'); a(f'v_mul_u32_u24 v44, {256*1280}, v44'); a('v_lshrrev_b32 v45, 3, v3'); a('v_mul_u32_u24 v45, 1280, v45')
    a(f'v_add_u32 v{OV}, v44, v45'); a(f'v_lshl_add_u32 v{OV}, v2, 3, v{OV}')
    a(f's_lshr_b32 s68, s{S_R}, 1'); a('s_lshl_b32 s68, s68, 7'); a(f's_add_u32 s68, s68, {FHH}')
    wait_flags(68, o.get('pre4', 0))
    k.stamp()
    AFR = [32, 56, 80]
    AC2 = 104
    def a2_load(i):
        a(f's_add_u32 s68, s80, {i*49152}')
        for ksl in range(6):
            v, off = (AV0, 1024*ksl) if ksl < 4 else (AV1, 1024*(ksl-4))
            k.vmem(f'buffer_load_dwordx4 {vr(AFR[i%3]+4*ksl,4)}, v{v}, {sr(S_WS,4)}, s68 offen offset:{off} sc1', f'h{i}')
    for i in range(3): a2_load(i)
    def reduce_tile(i):
        l = k.lab('red')
        a(f's_sub_u32 s81, s{S_W}, {(5*i) & 7}'); a('s_and_b32 s81, s81, 7'); a('s_cmp_ge_u32 s81, 5'); a(f's_cbranch_scc1 {l}')
        buf = L_W + (i % 2) * 40960
        a('s_lshl_b32 s68, s81, 10'); a(f's_add_u32 s68, s68, {buf}'); a(f'v_add_u32 v{RR}, s68, v1')
        a(f's_mul_i32 s82, s{S_CD}, 160'); a('s_lshl_b32 s68, s81, 5'); a('s_add_u32 s82, s82, s68')
        a(f's_lshl_b32 s83, s{S_R}, 2'); a(f's_add_u32 s83, s83, {i}')
        a(f's_mul_i32 s68, s83, {16*1280}'); a('s_add_u32 s68, s68, s82'); a(f's_add_u32 s68, s68, {XR}')
        k.vmem(f'buffer_load_dwordx2 v[26:27], v{XV}, {sr(S_WS,4)}, s68 offen sc1', 'xr', cond=True)
        a('v_lshl_add_u32 v28, v2, 3, s82')
        a(f'ds_read_b64 v[28:29], v28 offset:{L_MOD + 2*3200}')
        R0, R1 = 124, 128
        a(f'ds_read_b128 {vr(R0,4)}, v{RR}')
        for ww in range(1, 8):
            a(f'ds_read_b128 {vr(R1,4)}, v{RR} offset:{5120*ww}')
            a('s_waitcnt lgkmcnt(0)')
            a(f'v_pk_add_f32 {vr(R0,2)}, {vr(R0,2)}, {vr(R1,2)}'); a(f'v_pk_add_f32 {vr(R0+2,2)}, {vr(R0+2,2)}, {vr(R1+2,2)}')
        a('s_waitcnt vmcnt(0)')
        unpack(R1, R1 + 1, 26); unpack(R1 + 2, R1 + 3, 27)
        unpack(26, 27, 28); unpack(28, 29, 29) if False else (a('v_lshlrev_b32 v28, 16, v29'), a('v_and_b32 v29, 0xffff0000, v29'))
        for q in range(4): a(f'v_fmac_f32 v{R1+q}, v{26+q}, v{R0+q}')
        a(f'v_cvt_pk_bf16_f32 v26, v{R1}, v{R1+1}'); a(f'v_cvt_pk_bf16_f32 v27, v{R1+2}, v{R1+3}')
        a(f's_mul_i32 s68, s83, {2*1280}'); a('s_add_u32 s68, s68, s82')
        k.vmem(f'buffer_store_dwordx2 v[26:27], v{OV}, {sr(S_OUT,4)}, s68 offen', 'st', cond=True)
        a.label(l)
    for i in range(4):
        k.wait_vm(f'h{i}')
        for ksl in range(6):
            for T in range(5):
                d = vr(AC2 + 4*T, 4)
                a(f'v_mfma_f32_16x16x32_bf16 {d}, {vr(WREG+(ksl*5+T)*4,4)}, {vr(AFR[i%3]+4*ksl,4)}, {d if ksl else 0}')
        if i == 0: a2_load(3)
        for T in range(5): a(f'ds_write_b128 v{RW}, {vr(AC2+4*T,4)} offset:{(i%2)*40960 + 1024*T}')
        a('s_waitcnt lgkmcnt(0)'); a('s_barrier')
        reduce_tile(i)
    k.stamp()
    if stamps:
        l = k.lab('st')
        a(f's_cmp_lg_u32 s{S_W}, 0'); a(f's_cbranch_scc1 {l}')
        a('s_lshl_b32 s68, s2, 8'); a(f's_add_u32 s68, s68, {STAMP}'); a('v_lshlrev_b32 v44, 2, v0')
        a(f'buffer_store_dword v135, v44, {sr(S_WS,4)}, s68 offen')
        a.label(l)
    a.label('L_end')
    a('s_endpgm')
    return k

HEADER = open('cdna_kernels/' + NAME + '.s.ref').read().split('; @launch')[0]

def emit(path, stamps=False, opts=None):
    k = gen(stamps, opts)
    out = [HEADER + f'; @launch grid=(256,1,1) block=(512,1,1) lds={LDS_BYTES}\n.amdgcn_target "amdgcn-amd-amdhsa--gfx950"\n.text\n']
    out.append(k.a.text())
    out.append('.p2align 10\n.type tab_data,@object\ntab_data:\n')
    names = list(k.T)
    nfr = 32 + 64
    data = np.zeros((nfr, 256), dtype=np.uint32)
    for n, i in k.fidx.items(): data[i] = k.T[n].reshape(-1)
    q = data.reshape(-1).view(np.uint64)
    for i in range(0, len(q), 8):
        out.append('.quad ' + ','.join('0x%x' % v for v in q[i:i+8]) + '\n')
    out.append(f'.size tab_data, {nfr*1024}\n')
    out.append(f'''.section .rodata,"a"
.p2align 6
.amdhsa_kernel {KN}
  .amdhsa_next_free_vgpr 256
  .amdhsa_next_free_sgpr 102
  .amdhsa_accum_offset 256
  .amdhsa_group_segment_fixed_size 0
  .amdhsa_kernarg_size 96
  .amdhsa_user_sgpr_count 2
  .amdhsa_user_sgpr_kernarg_segment_ptr 1
  .amdhsa_system_sgpr_workgroup_id_x 1
.end_amdhsa_kernel
''')
    open(path, 'w').write(''.join(out))
    print(path, 'insts', k.a.ninst, 'nop states', k.a.nops, 'stamps', k.nstamp)

if __name__ == '__main__':
    import json
    opts = json.loads(sys.argv[1]) if len(sys.argv) > 1 else {}
    emit('cdna_kernels/' + NAME + '.s', False, opts)
    emit('k_stamp.s', True, opts)
```

```python
import numpy as np
def bf16_bits(x):
    x = np.ascontiguousarray(x, dtype=np.float32)
    u = x.view(np.uint32)
    return (((u + 0x7FFF + ((u >> 16) & 1)) >> 16) & 0xFFFF).astype(np.uint32)
def cosr(num, den):
    num = np.asarray(num) % den
    v = np.cos(2 * np.pi * num / den)
    v[np.abs(v) < 1e-12] = 0.0
    return v
def sinr(num, den):
    num = np.asarray(num) % den
    v = np.sin(2 * np.pi * num / den)
    v[np.abs(v) < 1e-12] = 0.0
    return v
L = np.arange(64); G = L // 16; N = L % 16
def frag_bf16(fn):
    vals = np.stack([np.asarray(fn(G, N, jj), dtype=np.float64) + np.zeros(64) for jj in range(8)], 1)
    b = bf16_bits(vals)
    return (b[:, 0::2] | (b[:, 1::2] << 16)).astype(np.uint32)
def frag_f32(fn):
    vals = np.stack([np.asarray(fn(G, N, j), dtype=np.float64) + np.zeros(64) for j in range(4)], 1)
    return vals.astype(np.float32).view(np.uint32)
def build():
    T = {}
    T['B1re'] = frag_bf16(lambda g, n, jj: cosr((5 * g + jj) * n, 20) * (jj < 5))
    T['B1im'] = frag_bf16(lambda g, n, jj: -sinr((5 * g + jj) * n, 20) * (jj < 5))
    for t in range(2):
        T[f'TW1c{t}'] = frag_f32(lambda g, n, j: cosr((8 * g + 2 * j + t) * n, 640))
    for t in range(2):
        T[f'TW1s{t}'] = frag_f32(lambda g, n, j: sinr((8 * g + 2 * j + t) * n, 640))
    T['S2Clo'] = frag_bf16(lambda g, m, jj: cosr((8 * g + jj) * m, 32))
    T['S2Slo'] = frag_bf16(lambda g, m, jj: sinr((8 * g + jj) * m, 32))
    T['S2nSlo'] = frag_bf16(lambda g, m, jj: -sinr((8 * g + jj) * m, 32))
    T['S2Chi'] = frag_bf16(lambda g, m, jj: cosr((8 * g + jj) * (m + 16), 32))
    T['S2Shi'] = frag_bf16(lambda g, m, jj: sinr((8 * g + jj) * (m + 16), 32))
    T['S2nChi'] = frag_bf16(lambda g, m, jj: -cosr((8 * g + jj) * (m + 16), 32))
    def rot(num, den, ri, rip, sg):
        c = cosr(num, den); s = sinr(num, den) * sg
        return np.where(ri == rip, c, np.where(ri == 0, -s, s))
    for mt in range(2):
        T[f'F16f{mt}'] = frag_bf16(lambda g, m, jj: rot((8 * mt + m // 2) * (4 * g + jj // 2), 16, m % 2, jj % 2, -1))
    for mt in range(2):
        T[f'F16p{mt}'] = frag_bf16(lambda g, m, jj: rot((8 * mt + m // 2) * (8 * (jj // 4) + 2 * g + (jj // 2) % 2), 16, m % 2, jj % 2, 1))
    for mt in range(2):
        T[f'F16i{mt}'] = frag_bf16(lambda g, m, jj: rot((8 * mt + m // 2) * (4 * g + jj // 2), 16, m % 2, jj % 2, 1))
    for t in range(2):
        for tp in range(2):
            for ri in range(2):
                T[f'I1_{t}{tp}{ri}'] = frag_bf16(lambda g, n, jj: rot((2 * n + tp) * (16 * t + 4 * g + jj // 2), 32, ri + 0 * n, jj % 2, 1) * (-1 if (t == 1 and jj % 2 == 1) else 1))
    wgt = np.array([1] + [2] * 9 + [1] + [0] * 5) / (640.0 * 2048.0)
    for tp in range(2):
        T[f'TW3c{tp}'] = frag_f32(lambda g, n, j: cosr((2 * n + tp) * (4 * g + j), 640) * wgt[4 * g + j])
    for tp in range(2):
        T[f'TW3s{tp}'] = frag_f32(lambda g, n, j: sinr((2 * n + tp) * (4 * g + j), 640) * wgt[4 * g + j])
    def i2(q, g, jj):
        b = 4 * g + jj // 2
        v = cosr(q * b, 20) if jj % 2 == 0 else -sinr(q * b, 20)
        return v * (b <= 10)
    T['I2_0'] = frag_bf16(lambda g, m, jj: i2(5 * (m // 4) + m % 4, g, jj))
    T['I2_1'] = frag_bf16(lambda g, m, jj: i2(5 * (m // 4) + 4, g, jj) * (m % 4 == 0))
    return T
if __name__ == '__main__':
    T = build(); print(len(T), list(T)[:40])
```

```python
import sys, os
sys.path.insert(0, os.path.dirname(os.path.abspath(__file__)))
import numpy as np
from asmlib import Asm
import tables

NAME = 'adaLN_cond__spectral_gfnet__glu_gated_bilinear__prompt'
KN = NAME + '_kernel'

EPOCH = 0x0
MODG = 0x1000
MODP = 0x40000
STAMP = 0x10000
FLG = 0x80000
FH2 = 0x28000
HN1 = 0x60000
HN2 = 0x68000
FHH = 0x1D00000
XP = 1664
NCT = 23
X1 = 0x100000
X2 = 0x480000
H2 = 0x800000
XR = 0xB00000
HH = 0xE00000
W1R = 0x1400000
W2R = 0x1800000
FRB = 0x1E00000
WS_SIZE = 0x2300000
POLL_LIMIT = 200000

L_MOD = 0
L_TAB = 8192
L_FFT = 40960
L_RP = 73728
L_FL = 40960
L_P0 = 61440
L_A = 40960
L_X = 8192
L_RED = 40960
LDS_BYTES = 163840

def vr(a, n=1): return f'v{a}' if n == 1 else f'v[{a}:{a+n-1}]'
def sr(a, n=1): return f's{a}' if n == 1 else f's[{a}:{a+n-1}]'
VST = 5

class K:
    def __init__(self, stamps=False, opts=None):
        self.a = Asm(); self.stamps = stamps; self.o = opts or {}
        self.vm = []; self.lg = []; self.deferred = []
        self.nstamp = 0; self.stamp_names = []
        self.T = tables.build()
        self.fidx = {n: i for i, n in enumerate(self.T)}
        self.uid = 0
    def lab(self, p):
        self.uid += 1; return f'L_{p}_{self.uid}'
    def vmem(self, text, tag='x', cond=False):
        self.a(text); self.vm.append((tag, cond))
    def wait_vm(self, tag, extra=''):
        idx = max([i for i, (t, c) in enumerate(self.vm) if t == tag], default=None)
        if idx is None:
            if extra: self.a(f's_waitcnt {extra}')
            return
        n = sum(1 for (t, c) in self.vm[idx + 1:] if not c)
        assert n <= 63, n
        self.a(f's_waitcnt vmcnt({n}) {extra}'.strip())
        self.vm = self.vm[idx + 1:]
    def ds(self, text, tag='d'):
        self.a(text); self.lg.append(tag)
    def wait_lg(self, tag):
        idx = max([i for i, t in enumerate(self.lg) if t == tag], default=None)
        if idx is None: return
        n = len(self.lg) - idx - 1
        self.a(f's_waitcnt lgkmcnt({min(n, 15)})')
        self.lg = self.lg[idx + 1:]
    def wait_all(self, extra=''):
        self.a(f's_waitcnt vmcnt(0) {extra}'.strip()); self.vm = []
    def tload(self, dst, name):
        self.a(f'ds_read_b128 {vr(dst,4)}, v1 offset:{L_TAB + 1024*self.fidx[name]}')
    def stamp(self, name=''):
        if self.o.get('st3') and name in ('wm arrived', 'mod published', 'LN1 done', 'fl landed', 'pre gather', 'gather ok', 'P2 prework', 'repack done', 'P3 prework', 'hint1', 'hint2', 'g1 setup', 'ep3 done'): return
        g = self.o.get('gate')
        if g and g[0] == name:
            l = self.lab('gate'); self.a.label(l)
            self.a('s_memrealtime s[96:97]'); self.a('s_waitcnt lgkmcnt(0)'); self.a('s_sub_u32 s96, s96, s98')
            self.a(f's_cmp_lt_u32 s96, {g[1]}'); self.a(f's_cbranch_scc1 {l}')
        if not self.stamps: return
        i = self.nstamp; self.nstamp += 1; self.stamp_names.append(name)
        assert i < 32
        self.a('s_memrealtime s[96:97]'); self.a('s_memtime s[100:101]'); self.a('s_waitcnt lgkmcnt(0)'); self.lg = []
        self.a(f'v_writelane_b32 v{VST}, s96, {i}'); self.a(f'v_writelane_b32 v{VST}, s{S_CNT if self.o.get("cnt") else 100}, {i+32}')

S_X, S_WR, S_WI, S_RP, S_C, S_WM, S_OUT, S_WS = 8, 12, 16, 20, 24, 28, 32, 36
S_TAG, S_W, S_S2, S_CNT, S_X1S, S_X2S, S_P2B, S_K1, S_CT, S_IDX, S_G, S_NT, S_R, S_CD, S_BG, S_BG2 = range(40, 56)
S_RPD = 56
S_X2T = 59
S_BGE, S_BG2E, S_ROT, S_ROT2 = 60, 61, 62, 63
S_TM = 64
S_DM = 66
WREG = 136

DEFAULTS = {'sleep': 4, 'norot': 1, 'b3': [0, 0, 4, 0], 'rpe': 1, 'w2s': 100, 'hx': 1, 'hint': 0, 'bh': 0, 'dr2': 2, 'bud': 8, 'dr3': 2}
def gen(stamps=False, opts=None):
    k = K(stamps, opts); a = k.a; o = k.o
    for kk, vv in DEFAULTS.items(): o.setdefault(kk, vv)
    WS = sr(S_WS, 4)
    a.raw(f'.globl {KN}\n.p2align 8\n.type {KN},@function\n{KN}:')
    a('s_cmp_ge_u32 s2, 256')
    a('s_cbranch_scc1 L_end')
    if o.get('gate'): a('s_memrealtime s[98:99]')
    a('s_load_dwordx16 s[68:83], s[0:1], 0')
    a('s_load_dwordx8 s[84:91], s[0:1], 64')
    a('s_getpc_b64 s[4:5]')
    a.label('L_pc')
    a('v_lshrrev_b32 v24, 3, v0')
    a('v_lshlrev_b32 v25, 1, v24')
    a('v_mul_u32_u24 v24, 7680, v24')
    a('v_and_b32 v26, 7, v0')
    a('v_lshl_add_u32 v24, v26, 4, v24')
    a('v_lshrrev_b32 v22, 6, v0')
    a(f'v_readfirstlane_b32 s{S_W}, v22')
    a(f's_mov_b32 s{S_IDX}, s2')
    a('s_and_b32 s94, s2, 3'); a('s_mul_i32 s93, s94, 320'); a(f's_mul_i32 s95, s94, {160*7680}')
    a(f's_lshr_b32 s94, s{S_IDX}, 2'); a('s_lshl_b32 s94, s94, 7'); a('s_add_u32 s95, s95, s94')
    a(f's_and_b32 s{S_K1}, s2, 7'); a(f's_lshr_b32 s{S_CT}, s2, 3')
    a('v_mov_b32 v23, v0')
    a('v_and_b32 v0, 63, v0')
    a('v_lshlrev_b32 v1, 4, v0')
    a('v_lshrrev_b32 v2, 4, v0')
    a('v_and_b32 v3, 15, v0')
    if stamps: a(f'v_mov_b32 v{VST}, 0')
    def srd(dst, src, size):
        a(f's_mov_b32 s{dst}, s{src}'); a(f's_mov_b32 s{dst+1}, s{src+1}')
        a(f's_mov_b32 s{dst+2}, {size}'); a(f's_mov_b32 s{dst+3}, 0x20000')
    a('s_waitcnt lgkmcnt(0)')
    srd(S_WM, 84, 640 * 7680); srd(S_C, 82, 1280)
    lnu = k.lab('nu')
    a('s_cmp_ge_u32 s2, 240'); a(f's_cbranch_scc1 {lnu}')
    for i in range(3):
        k.vmem(f'buffer_load_dwordx4 {vr(32+4*i,4)}, v24, {sr(S_WM,4)}, s95 offen nt', 'wm', cond=True)
        if i < 2: a(f's_add_u32 s95, s95, {64*7680}')
        if i == 1:
            a(f's_cmp_lt_u32 s{S_W}, 4'); a(f's_cselect_b32 s95, s95, {640*7680}')
    for i in range(3):
        k.vmem(f'buffer_load_ushort v{27+i}, v25, {sr(S_C,4)}, s93 offen offset:{128*i}', 'wm', cond=True)
    a('s_barrier')
    a.label(lnu)
    a(f's_load_dword s{S_TAG}, s[90:91], {EPOCH}')
    if o.get('dbg'): a('s_mov_b64 s[98:99], s[88:89]')
    k.stamp('start')
    a(f's_and_b32 s3, s{S_K1}, 3'); a('s_lshl_b32 s3, s3, 2'); a(f's_lshr_b32 s{S_G}, s{S_CT}, 3')
    a(f's_lshl_b32 s{S_R}, s{S_K1}, 2'); a(f's_add_u32 s{S_R}, s{S_R}, s{S_G}'); a(f's_add_u32 s{S_G}, s{S_G}, s3')
    a(f's_and_b32 s{S_CD}, s{S_CT}, 7')
    a(f's_lshr_b32 s3, s{S_K1}, 2'); a('s_lshl_b32 s3, s3, 3'); a(f's_add_u32 s{S_NT}, s{S_CD}, s3')
    a(f's_lshl_b32 s{S_S2}, s{S_G}, 4'); a(f's_add_u32 s{S_S2}, s{S_S2}, s{S_NT}'); a(f's_mov_b32 s{S_CNT}, 0')
    srd(S_X, 68, 2048 * 1280)
    a('v_mul_u32_u24 v4, 320, v2'); a('v_lshl_add_u32 v4, v3, 2, v4')
    a(f's_lshl_b32 s3, s{S_CT}, 10'); a(f's_lshl_b32 s6, s{S_W}, 7'); a('s_add_u32 s3, s3, s6'); a('s_min_u32 s95, s3, L_codeend-L_pc')
    def ctouch(r):
        a(f'v_mov_b32 v{r}, s95'); k.vmem(f'global_load_dword v{r}, v{r}, s[4:5] sc1', 'warm')
    ctouch(86)
    CT = o.get('ct', 0)
    a(f's_lshl_b32 s3, s{S_W}, 8'); a(f's_add_u32 s3, s3, s{S_S2}'); a('s_mul_i32 s3, s3, 1280')
    for j in range(5):
        k.vmem(f'buffer_load_dword v{10+j}, v4, {sr(S_X,4)}, s3 offen offset:{64*j} nt', 'x')
    def i_tab(half, tag):
        a(f's_lshl_b32 s3, s{S_W}, 11')
        a(f's_add_u32 s6, s4, tab_data-L_pc+{16384*half}'); a('s_addc_u32 s7, s5, 0'); a('s_add_u32 s6, s6, s3'); a('s_addc_u32 s7, s7, 0')
        a(f's_add_u32 m0, s3, {L_TAB + 16384*half}')
        for c in range(2): k.vmem(f'global_load_lds_dwordx4 v1, s[6:7] offset:{1024*c}', tag)
    srd(S_WR, 70, 2048 * 642); srd(S_WI, 72, 2048 * 642)
    def i_fl():
        a(f's_lshr_b32 s68, s{S_CT}, 2'); a('s_lshl_b32 s68, s68, 4'); a(f's_and_b32 s69, s{S_CT}, 3'); a('s_lshl_b32 s69, s69, 8')
        a('s_add_u32 s68, s68, s69'); a(f's_add_u32 s68, s68, s{S_K1}')
        a(f's_lshr_b32 s69, s{S_W}, 2'); a('s_lshl_b32 s69, s69, 3'); a('s_add_u32 s68, s68, s69')
        a(f's_bfe_u32 s69, s{S_W}, 0x10001'); a('s_lshl_b32 s69, s69, 10'); a('s_add_u32 s68, s68, s69')
        a(f's_and_b32 s69, s{S_W}, 1'); a('s_lshl_b32 s69, s69, 7'); a('s_add_u32 s68, s68, s69')
        a('s_mul_i32 s68, s68, 642'); a('s_andn2_b32 s68, s68, 15')
        a(f's_lshl_b32 s3, s{S_W}, 10'); a(f's_add_u32 m0, s3, {L_FL}')
        a('s_mov_b32 exec_hi, 0x3ff')
        k.vmem(f'buffer_load_dwordx4 v1, {sr(S_WR,4)}, s68 offen nt lds', 'fl')
        a(f's_add_u32 m0, s3, {L_FL + 8192}')
        k.vmem(f'buffer_load_dwordx4 v1, {sr(S_WI,4)}, s68 offen nt lds', 'fl')
        a('s_mov_b32 exec_hi, -1')
    i_fl()
    i_tab(0, 'fl')
    srd(S_WS, 90, WS_SIZE); srd(S_OUT, 86, 2048 * 1280)
    a(f's_cmp_lt_u32 s{S_W}, 4')
    a(f's_cselect_b32 s{S_RP}, s76, s78'); a(f's_cselect_b32 s{S_RP+1}, s77, s79')
    a('s_cmp_lt_u32 s2, 160')
    a(f's_cselect_b32 s{S_RP}, s{S_RP}, s80'); a(f's_cselect_b32 s{S_RP+1}, s{S_RP+1}, s81')
    a(f's_mov_b32 s{S_RP+2}, {640*3072}'); a(f's_mov_b32 s{S_RP+3}, 0x20000')
    def only(cmp, body):
        l = k.lab('sk'); a(cmp); a(f's_cbranch_scc0 {l}'); body(); a.label(l)
    i_tab(1, 'fl')
    S_H2W = 79
    a(f's_mul_i32 s{S_H2W}, s{S_G}, 163840'); a(f's_lshl_b32 s3, s{S_NT}, 9'); a(f's_add_u32 s{S_H2W}, s{S_H2W}, s3'); a(f's_add_u32 s{S_H2W}, s{S_H2W}, {H2}')
    a(f's_lshl_b32 s68, s{S_W}, 14'); a(f's_add_u32 s68, s68, s{S_H2W}')
    for i in range(4): a(f'v_mov_b32 v{200+i}, -1')
    a('v_lshrrev_b32 v44, 5, v0'); a('v_mul_u32_u24 v44, 7680, v44'); a('v_add_u32 v44, v44, v1')
    k.vmem(f'buffer_store_dwordx4 v[200:203], v44, {WS}, s68 offen sc1', 'fill')
    a(f's_add_u32 s68, s68, {16*8192}'); a(f's_cmp_lt_u32 s{S_W}, 2'); a(f's_cselect_b32 s68, s68, {WS_SIZE}')
    k.vmem(f'buffer_store_dwordx4 v[200:203], v44, {WS}, s68 offen sc1', 'fill')
    RPE = o.get('rpe', 1)
    def rp_start():
        RA = 220; L4 = 65536
        lB, lJ = k.lab('rpB'), k.lab('rpJ')
        a('v_bfe_u32 v224, v0, 2, 2'); a('v_lshl_add_u32 v224, v2, 3, v224'); a('v_and_b32 v225, 3, v0')
        a('s_cmp_ge_u32 s2, 160'); a(f's_cbranch_scc1 {lB}')
        for c in range(3):
            a(f'v_add_u32 v44, {64*c}, v0'); a('v_mul_u32_u24 v45, 43691, v44'); a('v_lshrrev_b32 v45, 20, v45')
            a('v_mul_u32_u24 v46, 24, v45'); a('v_sub_u32 v46, v44, v46'); a('v_mul_u32_u24 v45, 3072, v45')
            a(f'v_lshl_add_u32 v{RA+c}, v46, 4, v45')
            if c: a(f'v_subrev_u32 v{RA+c}, {1024*c}, v{RA+c}')
        a(f's_mov_b32 s91, s{S_CT}')
        a(f's_and_b32 s92, s{S_W}, 3'); a('s_lshl_b32 s92, s92, 3'); a('s_lshl_b32 s93, s91, 5'); a('s_add_u32 s92, s92, s93')
        a('s_mul_i32 s92, s92, 3072'); a(f's_mul_i32 s93, s{S_K1}, 384'); a('s_add_u32 s92, s92, s93')
        a(f's_lshl_b32 s93, s{S_K1}, 3'); a(f's_add_u32 s93, s93, s{S_W}'); a('s_mul_i32 s93, s93, 20'); a('s_add_u32 s93, s93, s91')
        a('s_mul_i32 s93, s93, 3072')
        for c in range(3): a(f's_add_u32 s{S_RPD+c}, s93, {W1R + 1024*c}')
        a(f's_mul_i32 s3, s{S_W}, 48'); a(f's_add_u32 s3, s3, {L4}')
        a('v_mul_u32_u24 v224, 384, v224'); a('v_add_u32 v224, s3, v224'); a('v_lshl_add_u32 v216, v225, 3, v224')
        a('v_add_u32 v217, 12288, v216')
        a('v_and_b32 v47, 1, v0'); a('v_lshl_add_u32 v47, v47, 3, v224'); a('v_lshrrev_b32 v225, 1, v225'); a('v_mul_u32_u24 v225, 12288, v225')
        a('v_add3_u32 v218, v47, v225, 32'); a('v_mov_b32 v219, 1536')
        a(f's_branch {lJ}')
        a.label(lB)
        a(f's_mul_i32 s92, s{S_W}, 192')
        for c in range(3):
            a(f'v_add_u32 v44, {64*c}, v0'); a('v_add_u32 v44, s92, v44')
            a('v_mul_u32_u24 v45, 52429, v44'); a('v_lshrrev_b32 v45, 21, v45')
            a('v_mul_u32_u24 v46, 40, v45'); a('v_sub_u32 v46, v44, v46')
            a('v_lshrrev_b32 v47, 5, v45'); a('v_lshlrev_b32 v47, 30, v47')
            a('v_mul_u32_u24 v45, 1280, v45'); a('v_add_u32 v45, v45, v47')
            a(f'v_lshl_add_u32 v{RA+c}, v46, 4, v45')
            if c: a(f'v_subrev_u32 v{RA+c}, {1024*c}, v{RA+c}')
        a('s_sub_u32 s90, s2, 160'); a('s_lshr_b32 s91, s90, 1'); a('s_and_b32 s90, s90, 1')
        a(f's_mul_i32 s92, s91, {32*1280}'); a('s_mul_i32 s3, s90, 640'); a('s_add_u32 s92, s92, s3')
        for c in range(3):
            a(f's_mul_i32 s68, s{S_W}, 3'); a(f's_add_u32 s68, s68, {c}')
            a('s_mul_i32 s69, s68, 52'); a('s_lshr_b32 s69, s69, 8')
            a('s_mul_i32 s80, s69, 5'); a('s_sub_u32 s80, s68, s80')
            a('s_lshl_b32 s81, s90, 2'); a('s_add_u32 s69, s69, s81'); a('s_mul_i32 s69, s69, 48'); a('s_add_u32 s69, s69, s91')
            a('s_mul_i32 s69, s69, 5'); a('s_add_u32 s69, s69, s80'); a('s_lshl_b32 s69, s69, 10'); a(f's_add_u32 s69, s69, {W2R}')
            a('s_cmp_lt_u32 s68, 20'); a(f's_cselect_b32 s{S_RPD+c}, s69, {WS_SIZE}')
        a(f's_mul_i32 s3, s{S_W}, 96'); a(f's_add_u32 s3, s3, {L4}')
        a('v_mul_u32_u24 v224, 640, v224'); a('v_add_u32 v224, s3, v224'); a('v_lshl_add_u32 v216, v225, 3, v224')
        a('v_add_u32 v217, 32, v216'); a('v_add_u32 v218, 64, v216'); a('v_mov_b32 v219, 2560')
        a.label(lJ)
        a(f's_mul_i32 s3, s{S_W}, 3072')
        a(f's_add_u32 m0, s3, {L4}')
        for c in range(3): k.vmem(f'buffer_load_dwordx4 v{RA+c}, {sr(S_RP,4)}, s92 offen offset:{1024*c} nt lds', 'rp', cond=(RPE == 3))
        for c in range(3): a(f'v_add_u32 v{224+c}, v{216+c}, v219')
    RPV = 160
    def rp_tr():
        for c in range(3):
            a(f'ds_read_b64_tr_b16 {vr(RPV+4*c,2)}, v{216+c}'); a(f'ds_read_b64_tr_b16 {vr(RPV+4*c+2,2)}, v{224+c}')
    def rp_stores():
        for c in range(3): k.vmem(f'buffer_store_dwordx4 {vr(RPV+4*c,4)}, v1, {WS}, s{S_RPD+c} offen sc1', 'rps')
    if RPE == 1: rp_start()
    if RPE == 3: only('s_cmp_ge_u32 s2, 80', rp_start)
    a('s_waitcnt lgkmcnt(0)')
    a(f's_add_u32 s{S_TAG}, s{S_TAG}, 1')
    def p0(lo, n):
        lnu = k.lab('nu')
        a(f's_sub_u32 s3, s2, {lo}'); a(f's_cmp_ge_u32 s3, {n}'); a(f's_cbranch_scc1 {lnu}')
        a('v_and_b32 v52, 7, v0'); a('v_lshlrev_b32 v52, 5, v52'); a('v_lshl_add_u32 v52, v2, 3, v52')
        a(f's_lshl_b32 s3, s{S_W}, 8'); a(f's_add_u32 s3, s3, {L_P0}'); a('v_add_u32 v52, s3, v52')
        a('s_and_b32 s68, s2, 3'); a('s_mul_i32 s68, s68, 30720'); a(f's_lshr_b32 s69, s{S_IDX}, 2'); a('s_lshl_b32 s69, s69, 9')
        a('s_add_u32 s68, s68, s69'); a(f's_add_u32 s68, s68, {MODP}')
        a(f'v_lshlrev_b32 v53, 2, v0'); a(f'v_add_u32 v53, {L_P0}, v53'); a('v_lshlrev_b32 v54, 3, v0')
        save = list(k.vm)
        k.wait_vm('wm')
        k.vm = save
        k.stamp('wm arrived') if lo == 0 else None
        ACC = 100; C = 27; T = 48; WV = 32
        for i in range(3):
            a(f'v_lshlrev_b32 v{C+i}, 16, v{C+i}'); a(f'v_mul_f32 v{T+i}, 0xbfb8aa3b, v{C+i}')
        for i in range(3): a(f'v_exp_f32 v{T+i}, v{T+i}')
        for i in range(3): a(f'v_add_f32 v{T+i}, 1.0, v{T+i}')
        for i in range(3): a(f'v_rcp_f32 v{T+i}, v{T+i}')
        for i in range(3): a(f'v_mul_f32 v{T+i}, v{T+i}, v{C+i}')
        for i in range(3): a(f'v_cvt_pk_bf16_f32 v{C+i}, v{T+i}, 0')
        for i in range(3): a(f'v_lshlrev_b32 v{T+i}, 16, v{C+i}')
        for i in range(3):
            for q in range(4):
                w = WV + 4*i + q
                c0, c1 = (0, 0) if i == 0 else (f'v{ACC+2*q}', f'v{ACC+2*q+1}')
                a(f'v_dot2_f32_bf16 v{ACC+2*q}, v{w}, v{C+i}, {c0}'); a(f'v_dot2_f32_bf16 v{ACC+2*q+1}, v{w}, v{T+i}, {c1}')
        for j in range(4): a(f'v_permlane32_swap_b32 v{ACC+j}, v{ACC+j+4}')
        for j in range(4): a(f'v_add_f32 v{ACC+j}, v{ACC+j}, v{ACC+j+4}')
        for j in range(2): a(f'v_permlane16_swap_b32 v{ACC+j}, v{ACC+j+2}')
        for j in range(2): a(f'v_add_f32 v{ACC+j}, v{ACC+j}, v{ACC+j+2}')
        for j in range(2): a(f'v_add_f32_dpp v{ACC+j}, v{ACC+j}, v{ACC+j} row_ror:8 row_mask:0xf bank_mask:0xf')
        a(f'ds_write_b64 v52, {vr(ACC,2)}')
        a('s_waitcnt lgkmcnt(0)')
        a('s_barrier')
        a(f's_cmp_lg_u32 s{S_W}, 0'); a(f's_cbranch_scc1 {lnu}')
        for q in range(4): a(f'ds_read2st64_b32 {vr(56+2*q,2)}, v53 offset0:{2*q} offset1:{2*q+1}')
        a('s_waitcnt lgkmcnt(0)')
        a('v_pk_add_f32 v[56:57], v[56:57], v[58:59]'); a('v_pk_add_f32 v[60:61], v[60:61], v[62:63]')
        a('v_pk_add_f32 v[56:57], v[56:57], v[60:61]'); a('v_add_f32 v56, v56, v57')
        a(f'v_mov_b32 v57, s{S_TAG}')
        k.vmem(f'buffer_store_dwordx2 v[56:57], v54, {WS}, s68 offen sc1', 'st', cond=True)
        k.stamp('mod published') if lo == 0 else None
        a.label(lnu)
    p0(0, 80)
    if RPE == 2: rp_start()
    if RPE == 3:
        only('s_cmp_lt_u32 s2, 80', rp_start)
        k.vm = [e for e in k.vm if e[0] != 'rp'] + [('rp', False)] * 3
    a('v_lshlrev_b32 v87, 1, v4')
    a('v_lshrrev_b32 v85, 3, v3'); a('v_sub_u32 v85, v3, v85')
    a(f's_mov_b32 s{S_TM}, 0x80808080'); a(f's_mov_b32 s{S_TM+1}, 0x80808080'); a(f's_not_b64 {sr(S_DM,2)}, {sr(S_TM,2)}')
    a(f's_mul_i32 s3, s{S_S2}, {XP}')
    a(f's_add_u32 s{S_X1S}, s3, {X1}'); a(f's_add_u32 s{S_X2S}, s3, {X2}')
    a(f's_cmp_lt_u32 s{S_W}, 7'); a(f's_cselect_b32 s3, 512, 0'); a(f's_add_u32 s{S_X2T}, s{S_X2S}, s3')
    a(f's_mov_b32 s3, {512*XP}'); a('v_mul_lo_u32 v6, v2, s3'); a('v_lshl_add_u32 v6, v3, 2, v6')
    a(f's_lshl_b32 s3, s{S_W}, 6'); a('v_add_u32 v6, s3, v6'); a(f'v_add_u32 v7, {256*XP}, v6')
    a(f's_mul_i32 s3, s{S_W}, {2*XP}'); a(f'v_mul_u32_u24 v9, {32*XP}, v2'); a('v_lshl_add_u32 v8, v3, 2, s3')
    a('v_add_u32 v9, v9, v8'); a(f'v_mul_u32_u24 v44, {64*XP}, v2'); a('v_add_u32 v8, v8, v44')
    a(f's_mul_i32 s{S_P2B}, s{S_K1}, {256*XP}'); a(f's_lshl_b32 s3, s{S_CT}, 6'); a(f's_add_u32 s{S_P2B}, s{S_P2B}, s3')
    a(f's_lshl_b32 s{S_BG}, s{S_NT}, 2'); a(f's_and_b32 s3, s{S_W}, 3'); a(f's_add_u32 s{S_BG}, s{S_BG}, s3'); a(f's_lshl_b32 s{S_BG}, s{S_BG}, 1')
    a(f's_lshr_b32 s3, s{S_W}, 2'); a(f's_add_u32 s{S_BG}, s{S_BG}, s3'); a(f's_mul_i32 s{S_BG}, s{S_BG}, 30720'); a(f's_add_u32 s{S_BG}, s{S_BG}, {W1R}')
    a(f's_lshl_b32 s{S_BG2}, s{S_CD}, 3'); a(f's_add_u32 s{S_BG2}, s{S_BG2}, s{S_W}'); a(f's_mul_i32 s{S_BG2}, s{S_BG2}, 30720'); a(f's_add_u32 s{S_BG2}, s{S_BG2}, {W2R}')
    a(f's_lshr_b32 s3, s{S_CT}, 3'); a('s_mul_i32 s68, s3, 5'); a('s_lshr_b32 s68, s68, 1'); a(f's_add_u32 s{S_ROT}, s68, s{S_CD}')
    a(f's_cmp_ge_u32 s{S_ROT}, 10'); a('s_cselect_b32 s68, 10, 0'); a(f's_sub_u32 s{S_ROT}, s{S_ROT}, s68')
    a('s_mul_i32 s68, s3, 3'); a('s_lshr_b32 s68, s68, 1'); a(f's_add_u32 s{S_ROT2}, s68, s{S_CD}')
    a(f's_cmp_ge_u32 s{S_ROT2}, 6'); a('s_cselect_b32 s68, 6, 0'); a(f's_sub_u32 s{S_ROT2}, s{S_ROT2}, s68')
    if o.get('norot'): a(f's_mov_b32 s{S_ROT}, 0'); a(f's_mov_b32 s{S_ROT2}, 0')
    a(f's_add_u32 s{S_BGE}, s{S_BG}, 30720'); a(f's_mul_i32 s68, s{S_ROT}, 3072'); a(f's_add_u32 s{S_BG}, s{S_BG}, s68')
    a(f's_add_u32 s{S_BG2E}, s{S_BG2}, 30720'); a(f's_mul_i32 s68, s{S_ROT2}, 5120'); a(f's_add_u32 s{S_BG2}, s{S_BG2}, s68')
    bgs = {'w1': 0, 'w2': 0, 'pf': 0}
    def w1reg(j): return 136 + 12*((j // 3) % 4) + 4*(j % 3)
    W2MAP = [184 + 4*j for j in range(16)] + [116, 120, 124] + [160, 164, 168] + [20 + 4*j for j in range(6)] + [44, 48]
    def w2reg(j): return W2MAP[j]
    def wload(kind, cond=False):
        j = bgs[kind]; bgs[kind] = j + 1
        assert j < 30
        if kind == 'w1':
            k.vmem(f'buffer_load_dwordx4 {vr(w1reg(j),4)}, v1, {WS}, s{S_BG} offen offset:{1024*(j%3)} sc1', f'w1_{j}', cond)
            if j % 3 == 2:
                a(f's_add_u32 s{S_BG}, s{S_BG}, 3072'); a(f's_cmp_ge_u32 s{S_BG}, s{S_BGE}'); a('s_cselect_b32 s3, 30720, 0'); a(f's_sub_u32 s{S_BG}, s{S_BG}, s3')
        else:
            T = j % 5
            if not o.get('now2'): k.vmem(f'buffer_load_dwordx4 {vr(w2reg(j),4)}, v1, {WS}, s{S_BG2} offen offset:{1024*(T%4)} sc1', f'w2_{j}', cond)
            if T == 3: a(f's_add_u32 s{S_BG2}, s{S_BG2}, 4096')
            if T == 4:
                a(f's_add_u32 s{S_BG2}, s{S_BG2}, 1024'); a(f's_cmp_ge_u32 s{S_BG2}, s{S_BG2E}'); a('s_cselect_b32 s3, 30720, 0'); a(f's_sub_u32 s{S_BG2}, s{S_BG2}, s3')
    def bg(kind, n, cond=False):
        for _ in range(n):
            if bgs['pf'] >= 28: return
            wload('w1' if bgs['pf'] < 12 else 'w2', cond); bgs['pf'] += 1
    def bgw(n):
        NW1 = o.get('nw1', 0)
        n = min(n, 28 - bgs['pf'])
        m = max(0, min(n, NW1 - bgs['pf']))
        if m > 0: only(f's_cmp_lt_u32 s{S_CT}, {NCT}', lambda: bg('w1', m, True))
        bg('w1', n - m)
    def layernorm(X, t0, t1):
        a(f'v_readfirstlane_b32 s68, v{X}')
        for i in range(10): a(f'v_subrev_f32 v{X+i}, s68, v{X+i}')
        a(f'v_add_f32 v{t0}, v{X}, v{X+1}'); a(f'v_mul_f32 v{t1}, v{X}, v{X}')
        a(f'v_fmac_f32 v{t1}, v{X+1}, v{X+1}')
        for i in range(2, 10):
            a(f'v_add_f32 v{t0}, v{t0}, v{X+i}'); a(f'v_fmac_f32 v{t1}, v{X+i}, v{X+i}')
        for m in ('quad_perm:[1,0,3,2] row_mask:0xf', 'quad_perm:[2,3,0,1] row_mask:0xf', 'row_ror:4 row_mask:0xf', 'row_ror:8 row_mask:0xf',
                  'row_bcast:15 row_mask:0xa', 'row_bcast:31 row_mask:0xc'):
            for t in (t0, t1): a(f'v_add_f32_dpp v{t}, v{t}, v{t} {m} bank_mask:0xf')
        a(f'v_readlane_b32 s68, v{t0}, 63'); a(f'v_readlane_b32 s69, v{t1}, 63')
        a(f'v_mov_b32 v{t0}, 0x3acccccd')
        a(f'v_mul_f32 v{t1}, s69, v{t0}'); a(f'v_mul_f32 v{t0}, s68, v{t0}')
        a(f'v_fma_f32 v{t1}, -v{t0}, v{t0}, v{t1}')
        a(f'v_max_f32 v{t1}, 0, v{t1}'); a(f'v_add_f32 v{t1}, 0x3727c5ac, v{t1}')
        a(f'v_rsq_f32 v{t1}, v{t1}')
        a(f'v_mul_f32 v{t0}, v{t0}, v{t1}')
        for i in range(10): a(f'v_fma_f32 v{X+i}, v{X+i}, v{t1}, -v{t0}')
    def unpack(dst_lo, dst_hi, src):
        if dst_lo == src:
            a(f'v_and_b32 v{dst_hi}, 0xffff0000, v{src}'); a(f'v_lshlrev_b32 v{dst_lo}, 16, v{src}')
        else:
            a(f'v_lshlrev_b32 v{dst_lo}, 16, v{src}'); a(f'v_and_b32 v{dst_hi}, 0xffff0000, v{src}')
    def ematrix(dst, inv, t0):
        t1, t2, t3 = t0 + 1, t0 + 2, t0 + 3
        for e in range(2):
            a(f'v_lshrrev_b32 v{t0}, 1, v3'); a(f'v_lshl_add_u32 v{t1}, v2, 1, {e}')
            kk, ss = (t1, t0) if inv else (t0, t1)
            a(f'v_lshl_add_u32 v{ss}, v{ss}, 8, s{S_S2}')
            a(f'v_mul_u32_u24 v{t0}, v{kk}, v{ss}')
            a(f'v_and_b32 v{t1}, 1, v3')
            a(f'v_mul_u32_u24 v{t1}, {1536 if inv else 512}, v{t1}')
            a(f'v_add_u32 v{t0}, v{t0}, v{t1}'); a(f'v_and_b32 v{t0}, 2047, v{t0}')
            a(f'v_cvt_f32_u32 v{t0}, v{t0}'); a(f'v_mul_f32 v{t0}, 0x3a000000, v{t0}')
            a(f'v_cos_f32 v{t2}, v{t0}'); a(f'v_sin_f32 v{t3}, v{t0}')
            a(f'v_cvt_pk_bf16_f32 v{dst+e}, v{t2}, {"-" if inv else ""}v{t3}')
    def tagcheck(regs, tmp, mask):
        if len(regs) == 1:
            a(f'v_cmp_ne_u32 vcc, s{S_TAG}, v{regs[0]}')
        else:
            a(f'v_xor_b32 v{tmp}, s{S_TAG}, v{regs[0]}')
            for t in regs[1:]: a(f'v_bitop3_b32 v{tmp}, v{tmp}, v{t}, s{S_TAG} bitop3:0xf6')
            a(f'v_cmp_ne_u32 vcc, 0, v{tmp}')
        if mask: a(f's_and_b64 vcc, vcc, {sr(S_TM,2)}')
    def checked(loads, tag, regs, tmp, mask=False, extra='', each=None):
        k.wait_vm(tag, extra)
        rt, ok = k.lab('rt'), k.lab('ok')
        tagcheck(regs, tmp, mask)
        a(f's_cbranch_{"scc1" if mask else "vccnz"} {rt}')
        a.label(ok)
        def retry():
            a.label(rt)
            a(f's_add_u32 s{S_CNT}, s{S_CNT}, 1'); a(f's_cmp_gt_u32 s{S_CNT}, {POLL_LIMIT}'); a('s_cbranch_scc1 L_end')
            if each and o.get('focus', 1):
                a(f's_sleep {o.get("fsleep", 1)}')
                for r, ld in each:
                    sk = k.lab('sk')
                    a(f'v_cmp_ne_u32 vcc, s{S_TAG}, v{r}'); a(f's_and_b64 vcc, vcc, {sr(S_TM,2)}'); a(f's_cbranch_scc0 {sk}')
                    a(ld); a.label(sk)
            else:
                a(f's_sleep {o.get("sleep", 4)}')
                loads()
            a('s_waitcnt vmcnt(0)')
            tagcheck(regs, tmp, mask)
            a(f's_cbranch_{"scc1" if mask else "vccnz"} {rt}')
            a(f's_branch {ok}')
        k.deferred.append(retry)
    def one_lane_store(off_sgpr_or_imm, tmp):
        a(f'v_mov_b32 v{tmp}, 0'); a(f'v_mov_b32 v{tmp+1}, s{S_TAG}'); a('s_mov_b64 exec, 1')
        k.vmem(f'buffer_store_dword v{tmp+1}, v{tmp}, {WS}, {off_sgpr_or_imm} offen sc1', 'st', cond=True)
        a('s_mov_b64 exec, -1')
    EM = 18
    ematrix(EM, False, 44)
    P1P = 672
    LA_LO, LA_HI, LA_RD = 15, 16, 17
    a(f's_lshr_b32 s68, s{S_W}, 1'); a(f's_mul_i32 s68, s68, {P1P*4}'); a(f's_and_b32 s69, s{S_W}, 1'); a('s_lshl_b32 s69, s69, 2')
    a('s_add_u32 s68, s68, s69'); a(f's_add_u32 s68, s68, {L_FFT}')
    a(f'v_add_u32 v{LA_LO}, s68, v87')
    a(f's_add_u32 s69, s68, {520*4}'); a(f'v_sub_u32 v{LA_HI}, s69, v87')
    a(f'v_mul_u32_u24 v{LA_RD}, {P1P*4}, v2'); a(f'v_lshl_add_u32 v{LA_RD}, v85, 3, v{LA_RD}')
    a(f's_mul_i32 s68, s{S_W}, 112'); a(f's_add_u32 s68, s68, {L_FFT}'); a(f'v_add_u32 v{LA_RD}, s68, v{LA_RD}')
    a('v_bfe_u32 v20, v0, 3, 1'); a('v_lshrrev_b32 v44, 5, v0'); a('v_lshl_add_u32 v20, v44, 1, v20'); a('v_mul_u32_u24 v20, 30720, v20')
    a('v_and_b32 v21, 7, v0'); a('v_and_b32 v45, 1, v2'); a('v_lshl_add_u32 v21, v45, 3, v21')
    a('v_lshl_add_u32 v20, v21, 4, v20')
    a(f's_mul_i32 s70, s{S_W}, 1280'); a(f's_add_u32 s70, s70, {MODP}')
    a(f's_mul_i32 s3, s{S_W}, 320'); a('v_lshl_add_u32 v21, v21, 2, s3'); a('v_lshl_add_u32 v21, v44, 1, v21')
    a(f's_cmp_lt_u32 s{S_W}, 4'); a('s_cselect_b32 s71, 0, 1.0')
    a('s_sub_u32 s72, s2, 240'); a('s_lshl_b32 s72, s72, 3'); a(f's_add_u32 s72, s72, s{S_W}')
    a('s_sub_u32 s3, s72, 40'); a('s_cmp_lt_u32 s3, 20'); a('s_cselect_b32 s73, 1.0, 0')
    a('s_lshl_b32 s74, s72, 8'); a(f's_add_u32 s74, s74, {MODP + 10240}'); a('s_lshl_b32 s75, s72, 7'); a(f's_add_u32 s75, s75, {MODG}')
    a(f's_mul_i32 s3, s{S_W}, 112'); a(f's_lshl_b32 s68, s{S_K1}, 1'); a('s_add_u32 s3, s3, s68'); a(f's_add_u32 s3, s3, {L_FL}')
    a('v_mul_u32_u24 v44, 28, v2'); a('v_lshl_add_u32 v44, v85, 1, v44'); a('v_add_u32 v198, s3, v44')
    a(f's_mul_i32 s3, s{S_W}, {4*24576}'); a('v_mul_u32_u24 v199, 24576, v2'); a('v_lshl_add_u32 v199, v3, 4, v199'); a('v_add_u32 v199, s3, v199')
    a(f's_mul_i32 s78, s{S_K1}, {24*24576}'); a(f's_lshr_b32 s3, s{S_CT}, 2'); a('s_mul_i32 s3, s3, 3072'); a('s_add_u32 s78, s78, s3')
    a(f's_and_b32 s3, s{S_CT}, 3'); a('s_lshl_b32 s3, s3, 8'); a('s_add_u32 s78, s78, s3'); a(f's_add_u32 s78, s78, {FRB}')
    a(f's_lshr_b32 s76, s{S_W}, 2'); a('s_mul_i32 s76, s76, 80'); a(f's_lshr_b32 s3, s{S_NT}, 1'); a('s_add_u32 s76, s76, s3')
    a(f's_mul_i32 s77, s{S_W}, 12'); a(f's_lshr_b32 s3, s{S_CD}, 2'); a('s_add_u32 s77, s77, s3'); a('s_add_u32 s77, s77, 140')
    a('v_min_u32 v45, 15, v0')
    a('v_lshl_add_u32 v22, v45, 3, s76'); a('v_lshl_add_u32 v44, v45, 1, s77')
    a('v_cmp_gt_u32 vcc, 10, v45'); a('v_cndmask_b32 v22, v44, v22, vcc'); a('v_lshlrev_b32 v22, 7, v22')
    a(f's_mov_b32 s76, {FLG}')
    a('v_lshlrev_b32 v23, 28, v2'); a('v_lshl_add_u32 v23, v3, 2, v23')
    XO = 72; GR = 136
    for i in range(6): a(f'v_mov_b32 v{XO+i}, s{S_TAG}')
    a(f'v_mov_b32 v{GR+21}, s{S_TAG}'); a(f'v_mov_b32 v{GR+23}, s{S_TAG}')
    FO = 204
    for r in (3, 7, 10, 11): a(f'v_mov_b32 v{FO+r}, s{S_TAG}')
    a(f'v_mov_b32 v84, s{S_TAG}')
    S_PF = 94
    a(f's_lshr_b32 s80, s{S_W}, 2'); a(f's_and_b32 s81, s{S_W}, 3')
    a(f's_lshl_b32 s{S_PF}, s{S_G}, 1'); a(f's_add_u32 s{S_PF}, s{S_PF}, s80'); a(f's_lshl_b32 s{S_PF}, s{S_PF}, 8'); a(f's_lshl_b32 s68, s{S_NT}, 2')
    a(f's_add_u32 s{S_PF}, s{S_PF}, s68'); a(f's_add_u32 s{S_PF}, s{S_PF}, s81'); a(f's_lshl_b32 s{S_PF}, s{S_PF}, 7'); a(f's_add_u32 s{S_PF}, s{S_PF}, {FHH}')
    if o.get('prew', 0):
        a(f'v_not_b32 v45, v84'); a('v_lshlrev_b32 v44, 13, v0'); a('s_mov_b64 exec, 15')
        k.vmem(f'buffer_store_dword v45, v44, {WS}, s{S_PF} offen sc1', 'fill')
        a('s_mov_b64 exec, -1')
        def pw(base, idx):
            a(f's_lshl_b32 s68, {idx}, 7'); a(f's_add_u32 s68, s68, {base}')
            k.vmem(f'buffer_store_dword v45, v23, {WS}, s68 offen sc1', 'st', cond=True)
        only(f's_cmp_eq_u32 s{S_W}, 0', lambda: pw(FH2, f's{S_S2}'))
        only(f's_cmp_eq_u32 s{S_W}, 7', lambda: pw(FLG, 's2'))
    def prewrite(sb):
        a(f's_mul_i32 s3, s{S_W}, {256*XP}'); a(f's_add_u32 s3, s3, s{sb}')
        k.vmem(f'buffer_store_dwordx4 v[200:203], v1, {WS}, s3 offen sc1', 'fill')
        a('s_mov_b32 exec_hi, 0')
        k.vmem(f'buffer_store_dwordx4 v[200:203], v1, {WS}, s3 offen offset:1024 sc1', 'fill')
        a('s_mov_b32 exec_hi, -1')
    RES = o.get('res', 0)
    if RES:
        for i in range(4): a(f'v_not_b32 v{200+i}, v84')
    if RES & 1: prewrite(S_X1S)
    if RES & 2: prewrite(S_X2S)
    HINT = o.get('hx', 1)
    if HINT and o.get('prew', 0):
        only(f's_cmp_eq_u32 s{S_W}, 0', lambda: (pw(HN1, f's{S_S2}'), pw(HN2, 's2')))
    def hint_pub(base, idx):
        a('s_barrier')
        def f():
            a(f's_lshl_b32 s68, {idx}, 7'); a(f's_add_u32 s68, s68, {base}')
            k.vmem(f'buffer_store_dword v84, v23, {WS}, s68 offen sc1', 'st', cond=True)
        only(f's_cmp_eq_u32 s{S_W}, 0', f)
    def hint_wait(base, va, vd):
        ld = f'buffer_load_dword v{vd}, v{va}, {WS}, s80 offen sc1'
        a(f's_mov_b32 s80, {base}'); a('s_mov_b32 exec_hi, 0')
        k.vmem(ld, 'hn'); k.wait_vm('hn')
        rt, ok = k.lab('rt'), k.lab('ok')
        a(f'v_cmp_ne_u32 vcc, s{S_TAG}, v{vd}'); a(f's_cbranch_vccnz {rt}')
        a.label(ok)
        a('s_mov_b64 exec, -1')
        def retry():
            a.label(rt)
            a(f's_add_u32 s{S_CNT}, s{S_CNT}, 1'); a(f's_cmp_gt_u32 s{S_CNT}, {POLL_LIMIT}'); a('s_cbranch_scc1 L_end')
            a('s_mov_b64 exec, vcc'); a(f's_sleep {o.get("hsleep", 2)}')
            a(ld); a('s_waitcnt vmcnt(0)')
            a(f'v_cmp_ne_u32 vcc, s{S_TAG}, v{vd}'); a(f's_cbranch_vccnz {rt}')
            a(f's_branch {ok}')
        k.deferred.append(retry)
    p0(80, 160)
    XF = 100; AF = 24
    k.wait_vm('x')
    for j in range(5): unpack(XF + 2*j, XF + 2*j + 1, 10 + j)
    layernorm(XF, 44, 45)
    for j in range(5):
        a(f'v_cvt_pk_bf16_f32 v{XF+2*j}, v{XF+2*j}, 0'); a(f'v_cvt_pk_bf16_f32 v{XF+2*j+1}, 0, v{XF+2*j+1}')
    a(f'v_mov_b32 v{AF+3}, 0'); a(f'v_mov_b32 v{AF+7}, 0')
    k.stamp('LN1 done')
    k.wait_vm('fl')
    a('s_barrier')
    k.stamp('fl landed')
    FP = 176
    for i in range(16): a(f'ds_read_u16 v{FP+i}, v198 offset:{1024*i}')
    a('s_waitcnt lgkmcnt(0)')
    TB1, TTW, TS2 = 48, 56, 112
    for i, n in enumerate(['B1re', 'B1im']): k.tload(TB1 + 4*i, n)
    for i, n in enumerate(['TW1c0', 'TW1c1', 'TW1s0', 'TW1s1']): k.tload(TTW + 4*i, n)
    for i, n in enumerate(['S2Clo', 'S2Slo', 'S2nSlo', 'S2Chi', 'S2Shi', 'S2nChi']): k.tload(TS2 + 4*i, n)
    for i in range(8): a(f'v_lshl_or_b32 v{FO+4*(i//3)+i%3}, v{FP+8+i}, 16, v{FP+i}')
    def fl_stores():
        for h in range(3): k.vmem(f'buffer_store_dwordx4 {vr(FO+4*h,4)}, v199, {WS}, s78 offen offset:{1024*h} sc1', 'st', cond=True)
    only(f's_cmp_lt_u32 s{S_W}, 6', fl_stores)
    if RES & 4: prewrite(S_X1S)
    if RES & 8: prewrite(S_X2S)
    if o.get('pre0'): a(f's_sleep {o["pre0"]}')
    k.stamp('pre gather')
    def g_loads():
        for i in range(5): k.vmem(f'buffer_load_dwordx4 {vr(GR+4*i,4)}, v20, {WS}, s70 offen offset:{256*i} sc1', 'g')
        only('s_cmp_lt_u32 s72, 80', lambda: k.vmem(f'buffer_load_dwordx4 {vr(GR+20,4)}, v20, {WS}, s74 offen sc1', 'g', cond=True))
    g_loads()
    checked(g_loads, 'g', [GR + 2*t + 1 for t in range(12)], 45)
    k.stamp('gather ok')
    for i in range(6): a(f'v_permlane32_swap_b32 v{GR+4*i}, v{GR+4*i+2}')
    for i in range(6): a(f'v_add_f32 v{GR+4*i}, v{GR+4*i}, v{GR+4*i+2}')
    for i in range(6): a(f'v_add_f32_dpp v{GR+4*i}, v{GR+4*i}, v{GR+4*i} row_ror:8 row_mask:0xf bank_mask:0xf')
    for i in range(6): a(f'v_cvt_pk_bf16_f32 v{GR+4*i}, 0, v{GR+4*i}')
    for i in range(6): a(f'v_add_f32 v{GR+4*i}, s{71 if i < 5 else 73}, v{GR+4*i}')
    for i in range(6):
        a(f'v_cvt_pk_bf16_f32 v{GR+4*i}, v{GR+4*i}, v{GR+4*i}')
        a(f'ds_write_b16 v21, v{GR+4*i} offset:{L_MOD + 64*i if i < 5 else L_FFT + 16384}')
    a('s_waitcnt lgkmcnt(0)'); a('s_barrier')
    k.stamp('mod gathered')
    SA, CA = 32, 42
    for j in range(5): a(f'ds_read_b32 v{SA+2*j}, v4 offset:{L_MOD + 64*j}')
    for j in range(5): a(f'ds_read_b32 v{CA+j}, v4 offset:{L_MOD + 1280 + 64*j}')
    rp_tr()
    l = k.lab('h2'); a('s_cmp_ge_u32 s72, 80'); a(f's_cbranch_scc1 {l}')
    a(f's_mul_i32 s3, s{S_W}, 320'); a(f'v_and_b32 v{GR+4}, 7, v0'); a(f'v_lshl_add_u32 v{GR+5}, v{GR+4}, 3, s3')
    a(f'ds_read_b64 {vr(GR+6,2)}, v{GR+5} offset:{L_FFT + 16384}')
    a(f'v_lshlrev_b32 v{GR+4}, 4, v{GR+4}')
    a('s_waitcnt lgkmcnt(0)')
    a(f'v_mov_b32 v{GR}, v{GR+6}'); a(f'v_mov_b32 v{GR+2}, v{GR+7}')
    k.vmem(f'buffer_store_dwordx4 {vr(GR,4)}, v{GR+4}, {WS}, s75 offen sc1', 'st', cond=True)
    a.label(l)
    a('s_waitcnt lgkmcnt(0)')
    for j in range(5): unpack(SA + 2*j, SA + 2*j + 1, SA + 2*j)
    for j in range(5):
        for t in range(2): a(f'v_dot2_f32_bf16 v{XF+2*j+t}, v{CA+j}, v{XF+2*j+t}, v{SA+2*j+t}')
    for t in range(2):
        a(f'v_cvt_pk_bf16_f32 v{AF+4*t}, v{XF+t}, v{XF+2+t}'); a(f'v_cvt_pk_bf16_f32 v{AF+4*t+1}, v{XF+4+t}, v{XF+6+t}')
        a(f'v_cvt_pk_bf16_f32 v{AF+4*t+2}, v{XF+8+t}, 0')
    D1 = 32
    for t in range(2):
        for ri in range(2):
            a(f'v_mfma_f32_16x16x32_bf16 {vr(D1+8*ri+4*t,4)}, {vr(AF+4*t,4)}, {vr(TB1+4*ri,4)}, 0')
    def wflag():
        a(f's_lshl_b32 s68, s2, 7'); a(f's_add_u32 s68, s68, {FLG}')
        k.vmem(f'buffer_store_dword v84, v23, {WS}, s68 offen sc1', 'st', cond=True)
    RPS = o.get('rps', 1)
    if RPS == 1: rp_stores()
    def cmul_pk(ore, oim, re, im, c, s, fwd):
        a(f'v_pk_mul_f32 {vr(ore,2)}, {vr(re,2)}, {vr(c,2)}'); a(f'v_pk_mul_f32 {vr(oim,2)}, {vr(im,2)}, {vr(c,2)}')
        n1 = '' if fwd else ' neg_lo:[1,0,0] neg_hi:[1,0,0]'
        n2 = ' neg_lo:[1,0,0] neg_hi:[1,0,0]' if fwd else ''
        return [f'v_pk_fma_f32 {vr(ore,2)}, {vr(im,2)}, {vr(s,2)}, {vr(ore,2)}{n1}', f'v_pk_fma_f32 {vr(oim,2)}, {vr(re,2)}, {vr(s,2)}, {vr(oim,2)}{n2}']
    TPr, TPi = 100, 88
    later = []
    for h in range(4): later += cmul_pk(TPr + 2*h, TPi + 2*h, D1 + 2*h, D1 + 8 + 2*h, TTW + 2*h, TTW + 8 + 2*h, True)
    for s in later: a(s)
    for ri, base in ((0, TPr), (1, TPi)):
        for j in range(4): a(f'v_cvt_pk_bf16_f32 v{AF+4*ri+j}, v{base+j}, v{base+4+j}')
    mats = {(0, 0): (0, 1), (0, 1): (2, 0), (1, 0): (3, 4), (1, 1): (4, 5)}
    for st in range(2):
        for h in range(2):
            for ri in range(2):
                d = vr(D1 + 8*h + 4*ri, 4)
                a(f'v_mfma_f32_16x16x32_bf16 {d}, {vr(TS2+4*mats[(h,ri)][st],4)}, {vr(AF+4*st,4)}, {d if st else 0}')
    TP = 100
    for h in range(2):
        for j in range(4): a(f'v_cvt_pk_bf16_f32 v{TP+4*h+j}, v{D1+8*h+j}, v{D1+8*h+4+j}')
        if h == 0:
            a(f'ds_write2_b32 v{LA_LO}, v{TP}, v{TP+1} offset0:0 offset1:40'); a(f'ds_write2_b32 v{LA_LO}, v{TP+2}, v{TP+3} offset0:80 offset1:120')
    a(f'ds_write2_b32 v{LA_HI}, v{TP+4}, v{TP+5} offset0:120 offset1:80'); a(f'ds_write2_b32 v{LA_HI}, v{TP+6}, v{TP+7} offset0:40 offset1:0')
    a('s_waitcnt lgkmcnt(0)'); a('s_barrier')
    for t in range(3): a(f'ds_read_b64 {vr(AF+2*t,2)}, v{LA_RD} offset:{896*t}')
    for t in range(3):
        a(f's_waitcnt lgkmcnt({2-t})')
        a(f'v_mfma_f32_16x16x16_bf16 {vr(D1+4*t,4)}, {vr(EM,2)}, {vr(AF+2*t,2)}, 0')
    a(f's_mov_b64 exec, {sr(S_DM,2)}')
    for t in range(3):
        for e in range(2): a(f'v_cvt_pk_bf16_f32 v{XO+2*t+e}, v{D1+4*t+2*e}, v{D1+4*t+2*e+1}')
    a('s_mov_b64 exec, -1')
    for t in range(3):
        for e in range(2):
            k.vmem(f'buffer_store_dword v{XO+2*t+e}, v{6+e}, {WS}, s{S_X1S} offen offset:{512*t} sc1', 'st')
    if HINT: hint_pub(HN1, f's{S_S2}')
    k.stamp('P1 done')
    if RPS == 2: a('s_barrier'); rp_stores()
    if CT: ctouch(86)
    vm_at_branch = list(k.vm)

    TW2, TF, WF, FIN = 48, 88, 112, 240
    lnw, lp3 = k.lab('nw'), k.lab('p3')
    def flag_load(): k.vmem(f'buffer_load_dword v82, v22, {WS}, s76 offen sc1', 'flg')
    a(f's_lshl_b32 s3, s{S_W}, 10'); a('v_add_u32 v20, s3, v1'); a('v_min_u32 v21, 2032, v20'); a(f's_mov_b32 s70, {MODG}'); a(f's_mov_b32 s71, {MODG+8192}')
    def fin_loads():
        k.vmem(f'buffer_load_dwordx4 {vr(FIN,4)}, v20, {WS}, s70 offen sc1', 'fin')
        k.vmem(f'buffer_load_dwordx4 {vr(FIN+4,4)}, v21, {WS}, s71 offen sc1', 'fin')
    def fin_commit():
        checked(fin_loads, 'fin', [FIN + 1, FIN + 3, FIN + 5, FIN + 7], 83)
        a(f'v_mov_b32 v{FIN+1}, v{FIN+2}'); a(f'v_mov_b32 v{FIN+5}, v{FIN+6}'); a('v_lshrrev_b32 v20, 1, v20'); a('v_lshrrev_b32 v21, 1, v21')
        a(f'ds_write_b64 v20, {vr(FIN,2)} offset:{L_MOD+2560}'); a(f'ds_write_b64 v21, {vr(FIN+4,2)} offset:{L_MOD+2560+4096}')
    a(f's_cmp_ge_u32 s{S_CT}, {NCT}'); a(f's_cbranch_scc1 {lnw}')
    a(f's_mul_i32 s78, s{S_K1}, 24'); a(f's_add_u32 s78, s78, s{S_CT}'); a('s_mul_i32 s78, s78, 24576'); a(f's_mul_i32 s3, s{S_W}, 3072')
    a('s_add_u32 s78, s78, s3'); a(f's_add_u32 s78, s78, {FRB}')
    WP = 224
    def f_loads():
        for h in range(3): k.vmem(f'buffer_load_dwordx4 {vr(WP+4*h,4)}, v1, {WS}, s78 offen offset:{1024*h} sc1', 'wf')
    f_loads()
    for i, n in enumerate(['F16f0', 'F16f1', 'F16p0', 'F16p1', 'F16i0', 'F16i1']): k.tload(TF + 4*i, n)
    a(f's_lshl_b32 s68, s{S_W}, 1'); a('s_add_u32 s69, s68, 1')
    for i in range(4):
        a(f'v_lshl_add_u32 v46, v2, 1, {8*(i//2) + i%2}')
        for x in range(2):
            d = TW2 + 2*(4*x + i)
            a(f'v_mul_u32_u24 v{d}, s{68+x}, v46'); a(f'v_cvt_f32_u32 v{d}, v{d}'); a(f'v_mul_f32 v{d}, 0x3b800000, v{d}')
            a(f'v_sin_f32 v{d+1}, v{d}'); a(f'v_cos_f32 v{d}, v{d}')
    LW2, LR2 = 15, 16
    a(f's_lshr_b32 s68, s{S_W}, 1'); a('s_lshl_b32 s68, s68, 8'); a(f's_and_b32 s69, s{S_W}, 1'); a('s_lshl_b32 s69, s69, 3')
    a('s_add_u32 s68, s68, s69'); a(f's_add_u32 s68, s68, {L_FFT}')
    a(f'v_lshlrev_b32 v{LW2}, 11, v2'); a(f'v_lshl_add_u32 v{LW2}, v3, 4, v{LW2}'); a(f'v_add_u32 v{LW2}, s68, v{LW2}')
    a(f's_lshl_b32 s68, s{S_W}, 11'); a(f's_add_u32 s68, s68, {L_FFT}'); a(f'v_add_u32 v{LR2}, s68, v1')
    for i in range(4): a(f's_add_u32 s{72+i}, s{S_P2B}, {X1 + i*16*XP}')
    XO2 = 128
    for i in range(8): a(f'v_mov_b32 v{XO2+i}, s{S_TAG}')
    checked(f_loads, 'wf', [WP + 3, WP + 7, WP + 11], 83)
    for i in range(8): unpack(WF + 2*i, WF + 2*i + 1, WP + 4*(i//3) + i%3)
    if o.get('pre1'): a(f's_sleep {o["pre1"]}')
    k.stamp('P2 prework')
    if HINT:
        a('v_lshrrev_b32 v32, 1, v0'); a('v_lshlrev_b32 v32, 4, v32'); a('v_and_b32 v33, 1, v0'); a(f's_lshl_b32 s3, s{S_W}, 1')
        a('v_add3_u32 v32, v32, v33, s3'); a('v_lshlrev_b32 v32, 7, v32')
        hint_wait(HN1, 32, 33); k.stamp('hint1')
    BF = 24
    x1l = [(BF + 4*ue + i, f'buffer_load_dword v{BF+4*ue+i}, v8, {WS}, s{72+i} offen offset:{XP*ue} sc1') for i in range(4) for ue in range(2)]
    def x1_loads():
        for r, t in x1l: k.vmem(t, 'x1')
    x1_loads()
    checked(x1_loads, 'x1', [BF + t for t in range(8)], 44, True, 'lgkmcnt(0)', x1l)
    k.stamp('X1 ok')
    D = 32; PK = 64; CM = 72
    B2 = o.get('b2', [0, 0, 0, 0])
    def stage(matf):
        for x in range(2):
            for mt in range(2):
                a(f'v_mfma_f32_16x16x32_bf16 {vr(D+8*x+4*mt,4)}, {vr(matf(mt),4)}, {vr(BF+4*x,4)}, 0')
    def cmul8(tw, mode):
        neg = 'neg_hi:[1,0,0]' if mode == 'conj' else 'neg_lo:[1,0,0]'
        for half in range(2):
            for q in range(4):
                i = 4*half + q
                a(f'v_pk_mul_f32 {vr(CM+2*q,2)}, {vr(D+2*i,2)}, {vr(tw+2*i,2)} op_sel:[0,0] op_sel_hi:[1,0]')
            for q in range(4):
                i = 4*half + q
                a(f'v_pk_fma_f32 {vr(D+2*i,2)}, {vr(D+2*i,2)}, {vr(tw+2*i,2)}, {vr(CM+2*q,2)} op_sel:[1,1,0] op_sel_hi:[0,1,1] {neg}')
    def exchange(off, mid):
        for mt in range(2):
            for e in range(2):
                for x in range(2):
                    a(f'v_cvt_pk_bf16_f32 v{PK+4*mt+2*e+x}, v{D+8*x+4*mt+2*e}, v{D+8*x+4*mt+2*e+1}')
                a(f'ds_write_b64 v{LW2}, {vr(PK+4*mt+2*e,2)} offset:{off + (8*mt+e)*1024}')
        a('s_waitcnt lgkmcnt(0)'); a('s_barrier')
        for x in range(2): a(f'ds_read_b128 {vr(BF+4*x,4)}, v{LR2} offset:{off + 1024*x}')
        mid()
        a('s_waitcnt lgkmcnt(0)')
    stage(lambda mt: TF + 4*mt)
    fin_loads()
    cmul8(TW2, 'conj')
    exchange(16384, lambda: only(f's_cmp_eq_u32 s{S_W}, 7', wflag))
    stage(lambda mt: TF + 4*mt)
    cmul8(WF, 'mul')
    for i in range(8): a(f'v_cvt_pk_bf16_f32 v{BF+i}, v{D+2*i}, v{D+2*i+1}')
    stage(lambda mt: TF + 8 + 4*mt)
    fin_commit()
    cmul8(TW2, 'mul')
    def buddy():
        a('s_lshl_b32 s68, s2, 7'); a(f's_add_u32 s68, s68, {HN2}')
        k.vmem(f'buffer_store_dword v84, v23, {WS}, s68 offen sc1', 'st', cond=True)
    BUD = not (HINT & 2)
    exchange(0, lambda: only('s_cmp_lt_u32 s2, 72', lambda: only(f's_cmp_eq_u32 s{S_W}, 0', buddy)) if BUD and not o.get('bud') else None)
    stage(lambda mt: TF + 16 + 4*mt)
    a(f's_mov_b64 exec, {sr(S_DM,2)}')
    for i in range(8): a(f'v_cvt_pk_bf16_f32 v{XO2+i}, v{D+2*i}, v{D+2*i+1}')
    a('s_mov_b64 exec, -1')
    for mt in range(2):
        for e in range(2):
            a(f's_add_u32 s3, s{S_P2B}, {X2 + (8*mt+e)*16*XP}')
            for ue in range(2):
                k.vmem(f'buffer_store_dword v{XO2+4*ue+2*mt+e}, v9, {WS}, s3 offen offset:{XP*ue} sc1', 'st')
    if HINT & 2: hint_pub(HN2, 's2')
    if BUD and o.get('bud'): only('s_cmp_lt_u32 s2, 72', lambda: only(f's_cmp_eq_u32 s{S_W}, {o["bud"] - 1}', buddy))
    k.stamp('P2 done')
    bg('w1', B2[3])
    a(f's_branch {lp3}')
    a.label(lnw)
    nb = dict(bgs); bgs.update(w1=0, w2=0, pf=0); k.vm = []
    k.vm = vm_at_branch
    if o.get('pren'): a(f's_sleep {o["pren"]}')
    fin_loads()
    fin_commit()
    a('s_waitcnt lgkmcnt(0)'); a('s_barrier')
    only(f's_cmp_eq_u32 s{S_W}, 7', wflag)
    k.stamp('repack done')
    if o.get('pren2'): a(f's_sleep {o["pren2"]}')
    bgs.update(nb)
    a.label(lp3)

    a('v_mov_b32 v17, v22')
    TI1, TT3, TI2 = 48, 88, 80
    TI2 = 128
    for t in range(2):
        for tp in range(2):
            for ri in range(2): k.tload(TI1 + 4*(4*t + 2*tp + ri), f'I1_{t}{tp}{ri}')
    for i, n in enumerate(['TW3c0', 'TW3c1', 'TW3s0', 'TW3s1']): k.tload(TT3 + 4*i, n)
    for i in range(2): k.tload(TI2 + 4*i, f'I2_{i}')
    ematrix(EM, True, 44)
    GA, SB, CBP = 104, 114, 80
    for base, col in ((GA, 1280), (SB, 1920)):
        for j in range(5): a(f'ds_read_b32 v{base+2*j}, v4 offset:{L_MOD + 2*col + 64*j}')
    for j in range(5): a(f'ds_read_b32 v{CBP+j}, v4 offset:{L_MOD + 2*2560 + 64*j}')
    a('s_waitcnt lgkmcnt(0)')
    for base in (GA, SB):
        for j in range(5): unpack(base + 2*j, base + 2*j + 1, base + 2*j)
    P3P = 344
    L_P3 = L_FFT + 16384
    LW3, LR0, LR1 = 20, 21, 22
    a(f'v_mul_u32_u24 v{LW3}, {2*P3P*4}, v2'); a(f'v_lshl_add_u32 v{LW3}, v85, 2, v{LW3}')
    a(f's_mul_i32 s68, s{S_W}, 56'); a(f's_add_u32 s68, s68, {L_P3}'); a(f'v_add_u32 v{LW3}, s68, v{LW3}')
    a(f'v_mov_b32 v{LR0}, {L_FFT + 16384 + 11264}'); a(f'v_cndmask_b32 v{LW3}, v{LW3}, v{LR0}, {sr(S_TM,2)}')
    a(f's_mul_i32 s68, s{S_W}, {P3P*4}'); a(f's_add_u32 s68, s68, {L_P3}')
    a(f'v_add_u32 v{LR0}, s68, v4'); a(f's_add_u32 s68, s68, {260*4}'); a(f'v_sub_u32 v{LR1}, s68, v4')
    a(f's_lshl_b32 s72, s{S_S2}, 3'); a(f's_add_u32 s72, s72, s{S_W}')
    a('s_lshr_b32 s73, s72, 2'); a('s_sub_u32 s73, 0, s73'); a('s_and_b32 s73, s73, 3'); a('s_lshl_b32 s73, s73, 4')
    a('v_lshlrev_b32 v15, 2, v3'); a('v_xor_b32 v15, s73, v15'); a('v_mul_u32_u24 v16, 40960, v2'); a('v_add_u32 v15, v15, v16')
    a(f's_lshl_b32 s74, s{S_W}, 6'); a(f's_add_u32 s74, s74, s{S_H2W}')
    a('s_mul_i32 s72, s72, 1280'); a(f's_add_u32 s73, s72, {XR}')
    if BUD:
        def bw():
            def f():
                a('s_lshl_b32 s80, s2, 7'); a(f's_add_u32 s80, s80, {HN2 - 184*128}'); a('v_mov_b32 v33, 0')
                ld = lambda: k.vmem(f'buffer_load_dword v32, v33, {WS}, s80 offen sc1', 'bd', cond=True)
                keep = list(k.vm); ld(); checked(ld, 'bd', [32], 32); k.vm = keep
            only(f's_cmp_eq_u32 s{S_W}, 0', f)
            a('s_barrier')
            if o.get('preb'): a(f's_sleep {o["preb"]}')
        only(f's_cmp_ge_u32 s{S_CT}, {NCT}', bw)
    if o.get('pre2'): a(f's_sleep {o["pre2"]}')
    if o.get('dr2'): k.wait_all()
    if o.get('dr2') == 2: a('s_barrier')
    k.stamp('P3 prework')
    x2l = [(BF + 2*t + e, f'buffer_load_dword v{BF+2*t+e}, v{6+e}, {WS}, s{S_X2S} offen offset:{512*t} sc1') for t in range(2) for e in range(2)]
    x2l += [(BF + 4 + e, f'buffer_load_dword v{BF+4+e}, v{6+e}, {WS}, s{S_X2T} offen offset:512 sc1') for e in range(2)]
    def x2_loads():
        for r, t in x2l: k.vmem(t, 'x2')
    if HINT & 2:
        a(f's_cmp_lt_u32 s{S_W}, 7'); a('s_cselect_b32 s3, 2, 1'); a('v_lshrrev_b32 v32, 3, v0'); a('v_min_u32 v32, s3, v32')
        a('v_lshlrev_b32 v32, 6, v32'); a('v_and_b32 v33, 7, v0'); a(f's_lshl_b32 s3, s{S_W}, 3')
        a('v_add3_u32 v32, v32, v33, s3'); a('v_lshlrev_b32 v32, 7, v32')
        hint_wait(HN2, 32, 33); k.stamp('hint2')
    x2_loads()
    checked(x2_loads, 'x2', [BF + t for t in range(6)], 44, True, '', x2l)
    k.stamp('X2 ok')
    B3 = o.get('b3', [0, 6, 0, 0])
    for t in range(3): a(f'v_mfma_f32_16x16x16_bf16 {vr(D+4*t,4)}, {vr(EM,2)}, {vr(BF+2*t,2)}, 0')
    wf_ld = lambda: k.vmem(f'buffer_load_dword v87, v17, {WS}, s76 offen sc1', 'flg2')
    WFC = o.get('wfc', 0)
    if CT: ctouch(126)
    if WFC == 0: wf_ld()
    for t in range(3):
        for e in range(2):
            a(f'v_cvt_pk_bf16_f32 v{BF+2*t+e}, v{D+4*t+2*e}, v{D+4*t+2*e+1}')
            a(f'ds_write_b32 v{LW3}, v{BF+2*t+e} offset:{448*t + P3P*4*e}')
    a('s_waitcnt lgkmcnt(0)'); a('s_barrier')
    a(f'ds_read2_b32 {vr(BF,2)}, v{LR0} offset0:0 offset1:20'); a(f'ds_read2_b32 {vr(BF+2,2)}, v{LR0} offset0:40 offset1:60')
    a(f'ds_read2_b32 {vr(BF+4,2)}, v{LR1} offset0:60 offset1:40'); a(f'ds_read2_b32 {vr(BF+6,2)}, v{LR1} offset0:20 offset1:0')
    for t in range(2):
        a(f's_waitcnt lgkmcnt({2-2*t})')
        for tp in range(2):
            for ri in range(2):
                d = vr(D + 8*ri + 4*tp, 4)
                a(f'v_mfma_f32_16x16x32_bf16 {d}, {vr(BF+4*t,4)}, {vr(TI1+4*(4*t+2*tp+ri),4)}, {d if t else 0}')
    UP = 48
    XF = 64
    later = []
    for h in range(4): later += cmul_pk(UP + 2*h, UP + 8 + 2*h, D + 2*h, D + 8 + 2*h, TT3 + 2*h, TT3 + 8 + 2*h, False)
    for s in later: a(s)
    for i in range(8): a(f'v_cvt_pk_bf16_f32 v{BF+i}, v{UP+i}, v{UP+8+i}')
    for tp in range(2):
        for qt in range(2):
            a(f'v_mfma_f32_16x16x32_bf16 {vr(D+8*tp+4*qt,4)}, {vr(TI2+4*qt,4)}, {vr(BF+4*tp,4)}, 0')
    for j in range(5): unpack(XF + 2*j, XF + 2*j + 1, 10 + j)
    if WFC == 0: checked(wf_ld, 'flg2', [87], 87)
    bgw(B3[2])
    for j in range(5):
        for t in range(2): a(f'v_fmac_f32 v{XF+2*j+t}, v{GA+2*j+t}, v{D+8*t+j}')
    for j in range(5): a(f'v_cvt_pk_bf16_f32 v{10+j}, v{XF+2*j}, v{XF+2*j+1}')
    for j in range(5): unpack(XF + 2*j, XF + 2*j + 1, 10 + j)
    layernorm(XF, 44, 45)
    CB = 48
    for j in range(5): unpack(CB + 2*j, CB + 2*j + 1, CBP + j)
    for i in range(10): a(f'v_fma_f32 v{XF+i}, v{XF+i}, v{CB+i}, v{SB+i}')
    for j in range(5):
        a(f'v_cvt_pk_bf16_f32 v{BF+j}, v{XF+2*j}, v{XF+2*j+1}')
        k.vmem(f'buffer_store_dword v{BF+j}, v15, {WS}, s74 offen sc1', 'h2')
        if j < 4: a('s_add_u32 s74, s74, 8192')
    a('s_barrier')
    def hint():
        a(f's_lshl_b32 s68, s{S_S2}, 7'); a(f's_add_u32 s68, s68, {FH2}'); a(f'v_mov_b32 v86, s{S_TAG}')
        k.vmem(f'buffer_store_dword v86, v23, {WS}, s68 offen sc1', 'st', cond=True)
    if o.get('hint', 1): only(f's_cmp_eq_u32 s{S_W}, 0', hint)
    for j in range(5):
        k.vmem(f'buffer_store_dword v{10+j}, v4, {WS}, s73 offen offset:{64*j} sc1', 'h2')
    k.stamp('P3 done')
    if WFC == 1: wf_ld(); checked(wf_ld, 'flg2', [87], 87)
    AK, AS = [2, 3], [4, 6]
    XW, XRD, HO1, HO2, DV, FPV, FPD, FLV, TAGV, CKA, CK, DV2 = 7, 8, 9, 10, 11, 12, 13, 14, 15, 16, 18, 19
    def acc(p, i): return 20 + (2*p + i)*12
    FR = [128, 132, 248, 252]
    L_C = 8192
    S_CO = 84
    S_HHB, S_CF, S_RT0, S_LW = 66, 74, 77, 78
    S_AK = 8
    a(f's_lshr_b32 s72, s{S_W}, 2'); a(f's_and_b32 s73, s{S_W}, 3')
    a(f's_mul_i32 s68, s{S_G}, 163840'); a('s_mul_i32 s69, s72, 81920'); a('s_add_u32 s68, s68, s69'); a('s_lshl_b32 s69, s73, 11')
    a('s_add_u32 s68, s68, s69'); a(f's_add_u32 s68, s68, {H2}'); a('s_add_u32 s69, s68, 81920')
    a(f's_lshl_b32 s70, s{S_ROT}, 13'); a(f's_add_u32 s{S_CO}, s68, s70')
    for c in range(1, 10):
        a(f's_add_u32 s{S_CO+c}, s{S_CO+c-1}, 8192'); a(f's_cmp_ge_u32 s{S_CO+c}, s69'); a(f's_cselect_b32 s{S_CO+c}, s68, s{S_CO+c}')
    a(f's_lshl_b32 s{S_LW}, s{S_W}, 11'); a(f's_add_u32 s{S_LW}, s{S_LW}, {L_C}')
    a(f's_mul_i32 s68, s{S_W}, 3072'); a(f'v_add_u32 v{XW}, s68, v1')
    a(f's_xor_b32 s68, s{S_W}, 4'); a('s_mul_i32 s68, s68, 3072'); a(f'v_add_u32 v{XRD}, s68, v1')
    a('v_lshrrev_b32 v48, 1, v2'); a('v_and_b32 v49, 1, v2')
    a(f'v_lshlrev_b32 v{HO1}, 4, v3'); a(f'v_lshl_add_u32 v{HO1}, v49, 3, v{HO1}')
    a(f'v_add_u32 v{HO1}, s68, v{HO1}')
    a(f'v_lshl_add_u32 v{HO2}, v48, 2, v{HO1}'); a(f'v_lshl_add_u32 v{HO1}, v48, 8, v{HO1}')
    a(f'v_and_b32 v{FPV}, 7, v0'); a(f'v_lshlrev_b32 v{FPV}, 7, v{FPV}'); a('v_bfe_u32 v48, v0, 3, 1'); a(f'v_lshl_add_u32 v{FPV}, v48, 13, v{FPV}')
    a(f'v_mov_b32 v{FLV}, v23'); a(f'v_mov_b32 v{TAGV}, s{S_TAG}')
    a(f'v_bfe_u32 v48, v0, 1, 4'); a('v_and_b32 v49, 31, v0'); a('v_lshlrev_b32 v49, 6, v49'); a(f'v_lshl_add_u32 v{CKA}, v48, 2, v49')
    a(f'v_add_u32 v{CKA}, s{S_LW}, v{CKA}'); a(f'v_add_u32 v{CKA+1}, 65536, v{CKA}')
    a('v_lshrrev_b32 v48, 2, v3'); a('v_sub_u32 v48, 0, v48'); a('v_and_b32 v48, 3, v48'); a('v_xor_b32 v48, v48, v2')
    a('v_lshlrev_b32 v48, 4, v48'); a('v_lshl_add_u32 v48, v3, 6, v48')
    a('s_mul_i32 s68, s72, 9216'); a(f's_add_u32 s68, s68, {L_C}'); a('s_mul_i32 s69, s72, 7168'); a(f's_add_u32 s69, s69, {L_C + 1024}')
    a(f'v_add_u32 v{AK[0]}, s68, v48'); a(f'v_add_u32 v{AS[0]}, s69, v48')
    a(f'v_add_u32 v{AK[1]}, 65536, v{AK[0]}'); a(f'v_add_u32 v{AS[1]}, 65536, v{AS[0]}')
    a(f's_lshl_b32 s{S_HHB}, s{S_G}, 3'); a(f's_add_u32 s{S_HHB}, s{S_HHB}, s72'); a(f's_mul_i32 s{S_HHB}, s{S_HHB}, 49152')
    a(f's_mul_i32 s68, s{S_NT}, 3072'); a(f's_add_u32 s{S_HHB}, s{S_HHB}, s68'); a('s_mul_i32 s68, s73, 768')
    a(f's_add_u32 s{S_HHB}, s{S_HHB}, s68'); a(f's_add_u32 s{S_HHB}, s{S_HHB}, {HH}')
    a(f's_lshl_b32 s{S_CF}, s{S_R}, 15'); a(f's_lshl_b32 s68, s{S_W}, 10'); a(f's_add_u32 s{S_CF}, s{S_CF}, s68'); a(f's_add_u32 s{S_CF}, s{S_CF}, {FHH}')
    a(f's_lshr_b32 s{S_RT0}, s{S_R}, 1'); a(f's_lshl_b32 s{S_RT0}, s{S_RT0}, 3'); a(f's_and_b32 s68, s{S_R}, 1'); a(f's_add_u32 s{S_RT0}, s{S_RT0}, s68')
    a(f's_mul_i32 s68, s{S_RT0}, 49152'); a(f's_mul_i32 s69, s{S_W}, 6144'); a('s_add_u32 s68, s68, s69'); a(f's_add_u32 s68, s68, {HH}'); a('s_add_u32 s69, s68, 6144')
    a(f's_lshl_b32 s70, s{S_ROT2}, 10'); a(f's_add_u32 s{S_AK}, s68, s70')
    for c in range(1, 6):
        a(f's_add_u32 s{S_AK+c}, s{S_AK+c-1}, 1024'); a(f's_cmp_ge_u32 s{S_AK+c}, s69'); a(f's_cselect_b32 s{S_AK+c}, s68, s{S_AK+c}')
    only('s_cmp_eq_u32 s2, 0', lambda: only(f's_cmp_eq_u32 s{S_W}, 0', lambda: k.vmem(f'buffer_store_dword v{TAGV}, v{FLV}, {WS}, {EPOCH} offen sc1', 'st', cond=True)))
    bgw(o.get('bh', 6))
    bgw(max(0, o.get('nw1', 0) - bgs['pf']))
    if o.get('pre3'): a(f's_sleep {o["pre3"]}')
    if o.get('dr3'): k.wait_all()
    if o.get('dr3') == 2: a('s_barrier')
    k.stamp('g1 setup')
    def I(text): return lambda: a(text)
    def V(text, tag): return lambda: k.vmem(text, tag)
    def DS(text, tag): return lambda: k.ds(text, tag)
    def dma1(c, h):
        a(f's_add_u32 m0, s{S_LW}, {(c % 8)*16384}')
        k.vmem(f'buffer_load_dwordx4 v1, {WS}, s{S_CO+c} offen offset:{1024*h} sc1 lds', f'a{c}')
    def ck_read(c):
        sl = c % 8
        k.ds(f'ds_read_b32 v{CK}, v{CKA + sl//4} offset:{(sl % 4)*16384}', 'ck')
    def ck_cmp(): a(f'v_cmp_eq_u32 s[82:83], -1, v{CK}')
    def ck_branch(c):
        ok = k.lab('ok'); rt = k.lab('rt')
        a('s_cmp_lg_u64 s[82:83], 0'); a(f's_cbranch_scc1 {rt}')
        a.label(ok)
        def retry():
            a.label(rt)
            a(f's_add_u32 s{S_CNT}, s{S_CNT}, 1'); a(f's_cmp_gt_u32 s{S_CNT}, {POLL_LIMIT}'); a(f's_cbranch_scc1 {ok}')
            a(f's_sleep {o.get("sleep", 4)}')
            dma1(c, 0); dma1(c, 1); a('s_waitcnt vmcnt(0)'); ck_read(c); a('s_waitcnt lgkmcnt(0)'); ck_cmp()
            a('s_cmp_lg_u64 s[82:83], 0'); a(f's_cbranch_scc1 {rt}')
            a(f's_branch {ok}')
        k.deferred.append(retry)
    k.lg = []
    if o.get('hint', 1):
        a(f's_lshl_b32 s70, s{S_G}, 2'); a('s_add_u32 s70, s70, s73'); a('s_lshl_b32 s70, s70, 9'); a(f's_add_u32 s70, s70, {FH2}')
        a(f'v_and_b32 v{DV}, 0x180, v{FPV}')
        def h_load(): k.vmem(f'buffer_load_dword v{FPD}, v{DV}, {WS}, s70 offen sc1', 'hint')
        h_load()
        checked(h_load, 'hint', [FPD], FPD)
        k.stamp('hint ok')
    dma1(0, 0); dma1(0, 1)
    while bgs['w1'] < 3: wload('w1')
    dma1(1, 0); dma1(1, 1)
    while bgs['w1'] < 6: wload('w1')
    k.wait_vm('a0'); ck_read(0); k.wait_lg('ck'); ck_cmp(); ck_branch(0)
    a('s_barrier')
    k.stamp('A0 landed')
    EX = [139264, 40960, 65536, 98304]
    DVP = [DV, CK]; SV = CKA
    def ep_reads(p):
        dv = DVP[p % 2]
        return [I(f'v_add_u32 v{dv}, {EX[p]}, v{XRD}')] + [DS(f'ds_read_b128 {vr(acc(p,1)+4*T,4)}, v{dv} offset:{1024*T}', 'ep') for T in (2, 0, 1)]
    def ep_ops(p):
        ac = acc(p, 0); RX = acc(p, 1)
        ops = [f'v_add_f32 v{ac+i}, v{ac+i}, v{RX+i}' for i in (8, 9, 10, 11, 0, 1, 2, 3, 4, 5, 6, 7)]
        ops += [f'v_permlane32_swap_b32 v{ac+8}, v{ac+10}', f'v_permlane32_swap_b32 v{ac+9}, v{ac+11}']
        ops += [f'v_add_u32 v{RX}, {EX[p]}, v{HO1}', f'v_add_u32 v{RX+1}, {EX[p]}, v{HO2}']
        ops += [f'v_mul_f32 v{ac+i}, v{ac+i}, v{ac+4+i}' for i in range(4)]
        ops += [f'v_mul_f32 v{ac+8+i}, v{ac+8+i}, v{ac+10+i}' for i in range(2)]
        ops += [f'v_cvt_pk_bf16_f32 v{RX+2}, v{ac}, v{ac+1}', f'v_cvt_pk_bf16_f32 v{RX+3}, v{ac+2}, v{ac+3}', f'v_cvt_pk_bf16_f32 v{RX+4}, v{ac+8}, v{ac+9}']
        ops = [lambda: k.wait_lg('ep')] + [I(x) for x in ops]
        ops += [DS(f'ds_write_b64 v{RX}, {vr(RX+2,2)}', 'tw'), DS(f'ds_write_b32 v{RX+1}, v{RX+4} offset:512', 'tw'),
                DS(f'ds_read_b128 {vr(RX+8,4)}, v{DVP[p%2]}', f'tr{p}')]
        return ops
    def ep_store(p):
        RX = acc(p, 1)
        k.wait_lg(f'tr{p}'); a(f's_add_u32 s69, s{S_HHB}, {p*2*49152}')
        k.vmem(f'buffer_store_dwordx4 {vr(RX+8,4)}, v{SV}, {WS}, s69 offen sc1', f'hh{p}')
    def x_writes(p):
        return [I(f'v_add_u32 v{DV2}, {EX[p]}, v{XW}')] + [DS(f'ds_write_b128 v{DV2}, {vr(acc(p,1)+4*T,4)} offset:{1024*T}', 'xw') for T in range(3)]
    def pub_hh(p):
        k.wait_vm(f'hh{p}')
        a(f's_add_u32 s69, s{S_PF}, {p*8192}')
        k.vmem(f'buffer_store_dword v{TAGV}, v{FLV}, {WS}, s69 offen sc1', 'st')
    def hf_load(i, pair=False):
        if o.get('nohf'): return
        a(f's_add_u32 s70, s{S_CF}, {i*8192}')
        k.vmem(f'buffer_load_dword v{FPD}, v{FPV if pair else FP1}, {WS}, s70 offen sc1', f'hf{i}')
    def hf_check(i, pair=False):
        if o.get('nohf'): return
        checked(lambda: hf_load(i, pair), f'hf{i}', [FPD], FPD)
    FP1 = 0
    A0Q = [172, 176, 180, 136, 140, 144]
    AFR = [A0Q, [148, 152, 156, 52, 56, 60], [68 + 4*q for q in range(6)], A0Q]
    def a2_1(i, ksl):
        if o.get('noa2'): return
        a(f's_add_u32 s71, s{S_AK+ksl}, {i*98304}')
        k.vmem(f'buffer_load_dwordx4 {vr(AFR[i][ksl],4)}, v1, {WS}, s71 offen sc1', f'h{i}_{ksl}')

    GAP = o.get('gap', 36)
    NS = 360 + GAP
    slots = [[] for _ in range(NS + 1)]
    def put(s0, ops, per=1, stride=1):
        s_ = s0
        for j in range(0, len(ops), per):
            slots[s_] += ops[j:j+per]; s_ += stride
        return s_
    KO = 7
    seq = [(s_, p, i) for s_ in range(KO) for p in range(4) for i in range(2)]
    for p in range(4):
        for s_ in range(KO, 10): seq += [(s_, p, 1), (s_, p, 0)] if s_ == 9 else [(s_, p, 0), (s_, p, 1)]
    PD = o.get('pd', 3)
    def rd1(q):
        s_, p, i = seq[q]; sl = s_ % 8
        k.ds(f'ds_read_b128 {vr(FR[q%4],4)}, v{(AK if i == 0 else AS)[sl//4]} offset:{(sl%4)*16384 + p*2048}', f'f{q}')
    for q in range(80 - PD): slots[3*q].append(lambda q=q: rd1(q + PD))
    VAL = o.get('val', [[1], [2], [3], [4], [5, 6], [7, 8], [9]])
    BS = 24 - 3*PD - 1
    for s_ in range(KO):
        b0 = 24*s_
        for n_, c in enumerate(reversed(VAL[s_])):
            t0 = b0 + BS - 7 - 7*n_
            slots[t0] += [lambda c=c: k.wait_vm(f'a{c}'), lambda c=c: ck_read(c)]
            slots[t0 + 4] += [lambda: k.wait_lg('ck'), ck_cmp]
            slots[t0 + 6] += [lambda c=c: ck_branch(c)]
        slots[b0 + BS] += [I('s_barrier')]
    stream = []
    def add_w1(upto, earliest):
        pass
    nw = bgs['w1']
    cand = [(0, 'a', 2), (0, 'w', 2), (0, 'a', 3), (0, 'w', 3), (0, 'a', 4), (24, 'w', 4), (24, 'a', 5), (24, 'a', 6), (48, 'w', 5), (48, 'a', 7), (24 + BS + 1, 'a', 8),
            (72, 'w', 6), (48 + BS + 1, 'a', 9), (96, 'w', 7), (120, 'w', 8), (144, 'w', 9)]
    for e_, kind, c in cand:
        if kind == 'a': stream += [(e_, lambda c=c: dma1(c, 0)), (e_, lambda c=c: dma1(c, 1))]
        else: stream += [(e_, lambda: wload('w1')) for j in range(3*c, 3*c + 3) if j >= nw]
    PACE = o.get('pace', 3)
    busy = set(); cur = 1
    for e_, f in stream:
        cur = max(cur, e_ + 1)
        while cur % 3 == 0: cur += 1
        slots[cur].append(f); busy.add(cur); cur += PACE
    tb = 24*KO
    EPE = []
    for p in range(4):
        b0 = tb + 18*(p + 1)
        XB = o.get('xb', 5)
        put(b0 - 1, x_writes(p), per=1)
        slots[b0 + XB] += [lambda: k.wait_lg('xw'), I('s_barrier')]
        e = put(b0 + XB, ep_reads(p), per=2)
        e = put(e + o.get('epd', 2), ep_ops(p), per=o.get('epr', 3))
        e += o.get('eps', 4); slots[e].append(lambda p=p: ep_store(p)); e += 1
        EPE.append(e)
    assert EPE[3] <= 269 + GAP, EPE
    w2e = [0]*19 + [tb]*3 + [EPE[0]]*6 + [EPE[1]]*2
    cur = o.get('w2s', 80); P2 = o.get('pace2', 4)
    for j in range(bgs['w2'], 30):
        cur = max(cur, w2e[j])
        while cur % 3 == 0 or any(abs(cur - b) < 2 for b in busy): cur += 1
        slots[cur].append(lambda: wload('w2')); cur += P2
    W2END = cur
    RW, RR, OV, XV, GB, XR1, RR2 = 2, 3, 4, 6, 112, 16, 7
    RED = [8192, 8192 + 43520]; RB = 43520
    AC2 = [[128, 132, 248, 252, 64], [92, 96, 100, 104, 108]]
    OST = o.get('ost', '')
    g2 = 240 + GAP
    T0, T1 = 16, 17
    setup = [f's_mul_i32 s68, s{S_W}, 5440', f's_add_u32 s68, s68, {RED[0]}', f'v_lshrrev_b32 v{RW}, 8, v1',
             f'v_lshl_add_u32 v{RW}, v{RW}, 4, v1', f'v_add_u32 v{RW}, s68, v{RW}',
             f'v_lshrrev_b32 v{T0}, 4, v1', f'v_min_u32 v{T0}, 39, v{T0}', f'v_subrev_u32 v{T1}, 20, v{T0}', f'v_min_u32 v{T1}, v{T1}, v{T0}',
             f'v_sub_u32 v{T0}, v{T0}, v{T1}', f'v_lshrrev_b32 v{T0}, 4, v{T0}', f's_lshl_b32 s68, s{S_W}, 1', f'v_add_u32 v{T0}, s68, v{T0}',
             f'v_mul_u32_u24 v{RR}, 272, v{T1}', f'v_lshl_add_u32 v{RR}, v{T0}, 4, v{RR}', f'v_add_u32 v{RR}, {RED[0]}, v{RR}',
             f's_mul_i32 s68, s{S_CD}, 160', f'v_lshl_add_u32 v{T1}, v{T1}, 3, s68',
             f'v_mul_u32_u24 v{XV}, 1280, v{T0}', f'v_add_u32 v{XV}, v{XV}, v{T1}',
             f'v_and_b32 v{OV}, 7, v{T0}', f'v_mul_u32_u24 v{OV}, {256*1280}, v{OV}', f'v_lshrrev_b32 v{T0}, 3, v{T0}', f'v_mul_u32_u24 v{T0}, 1280, v{T0}',
             f'v_add3_u32 v{OV}, v{OV}, v{T0}, v{T1}', 's_mov_b32 s82, 0', 's_mov_b32 s83, 0xffffff00', f'v_mov_b32 v{T0}, 0x40000000', f'v_cndmask_b32 v{OV}, v{OV}, v{T0}, s[82:83]',
             f'v_cndmask_b32 v{XV}, v{XV}, v{T0}, s[82:83]',
             f's_mul_i32 s72, s{S_RT0}, {16*1280}', f's_add_u32 s72, s72, {XR}', f's_mul_i32 s73, s{S_RT0}, {2*1280}', f'v_add_u32 v{RR2}, {RB}, v{RR}']
    e = put(EPE[3] - 1, [I(x) for x in setup[:3]], per=3)
    e = put(EPE[3], [I(x) for x in setup[3:]], per=3)
    assert e <= g2 + 38, e
    slots[e] += [DS(f'ds_read_b64 {vr(GB+2,2)}, v{T1} offset:{L_MOD + 2*3200}', 'gb')]
    slots[g2 + 43] += [lambda: k.wait_lg('gb'), lambda: unpack(GB, GB + 1, GB + 2), lambda: unpack(GB + 2, GB + 3, GB + 3)]
    def red_tmp(i): return [AC2[i % 2][0], AC2[i % 2][1]] + AFR[i]
    def red_write(i): return [DS(f'ds_write_b128 v{RW}, {vr(AC2[i%2][T],4)} offset:{(i%2)*RB + 1088*T}', 'rw') for T in range(5)]
    def red_reads(i):
        rv = RR2 if i % 2 else RR
        return [DS(f'ds_read_b128 {vr(t,4)}, v{rv} offset:{5440*ww}', f'rr{ww//2}') for ww, t in enumerate(red_tmp(i))]
    def red_ops(i, pk=False):
        t = red_tmp(i); q = AC2[i % 2][2]
        def add(d, x, y):
            if pk: return [I(f'v_pk_add_f32 {vr(d+c,2)}, {vr(x+c,2)}, {vr(y+c,2)}') for c in (0, 2)]
            return [I(f'v_add_f32 v{d+c}, v{x+c}, v{y+c}') for c in range(4)]
        W = lambda n: [lambda: k.wait_lg(f'rr{n}')]
        ops = W(0) + add(q, t[0], t[1]) + W(1) + add(t[2], t[2], t[3]) + W(2) + add(t[4], t[4], t[5]) + add(q, q, t[2]) + W(3) + add(t[6], t[6], t[7])
        ops += add(q, q, t[4]) + add(q, q, t[6])
        x = XR1 + 2*(i % 2); u = t[2]
        ops += [lambda: k.wait_vm(f'xr{i}'), I(f'v_lshlrev_b32 v{u}, 16, v{x}'), I(f'v_and_b32 v{u+1}, 0xffff0000, v{x}'), I(f'v_lshlrev_b32 v{u+2}, 16, v{x+1}'), I(f'v_and_b32 v{u+3}, 0xffff0000, v{x+1}')]
        ops += [I(f'v_fmac_f32 v{u+c}, v{GB+c}, v{q+c}') for c in range(4)]
        ops += [I(f'v_cvt_pk_bf16_f32 v{x}, v{u}, v{u+1}'), I(f'v_cvt_pk_bf16_f32 v{x+1}, v{u+2}, v{u+3}'),
                lambda: (a(f's_add_u32 s69, s73, {i*4*1280}'), k.vmem(f'buffer_store_dwordx2 {vr(x,2)}, v{OV}, {sr(S_OUT,4)}, s69 offen {OST}', 'out'))]
        return ops
    def xr_load(i):
        a(f's_add_u32 s69, s72, {i*32*1280}')
        k.vmem(f'buffer_load_dwordx2 {vr(XR1+2*(i%2),2)}, v{XV}, {WS}, s69 offen sc1', f'xr{i}')
    for i in range(1, 4):
        b0 = g2 + 30*i
        X = o.get('g2x', '')
        if 'w' not in X: put(b0 + 1, red_write(i - 1), stride=o.get('rws', 1))
        if 'b' not in X: slots[b0 + 9] += [lambda: k.wait_lg('rw'), I('s_barrier')]
        if 'r' not in X: put(b0 + 9, red_reads(i - 1), per=2)
        slots[b0 + 10].append(lambda i=i: xr_load(i - 1))
        e = put(b0 + 14, red_ops(i - 1, 'p' in X), per=2 if 'p' in X else 3) if 'v' not in X else b0
        assert e <= b0 + 30, e
    slots[g2 + 90 + 20].append(lambda: xr_load(3))
    slots[1].append(I(f'v_and_b32 v{FP1}, 0x380, v{FPV}'))
    if CT:
        for s_ in o.get('cts', [62, 134]): slots[s_].append(lambda: ctouch(FPD))
    slots[163] += [I(f'v_add_u32 v{SV}, 256, v1'), I(f'v_lshrrev_b32 v{SV}, 10, v{SV}')]
    slots[164] += [I(f'v_lshl_add_u32 v{SV}, v{SV}, 30, v1')]
    e3 = EPE[3]
    slots[EPE[0] + o.get('pubd', 16)].append(lambda: pub_hh(0))
    slots[min(EPE[1] + o.get('pubd', 16), 240)].append(lambda: pub_hh(1))
    slots[o.get('hf0', 246)].append(lambda: hf_load(0))
    ST = (lambda n: (lambda: k.stamp(n))) if o.get('st3') else (lambda n: (lambda: None))
    slots[240].append(ST('s240')); slots[245].append(ST('bar3')); slots[249].append(ST('epw'))
    slots[e3] = [ST('hh3 st'), lambda: hf_check(0), ST('chk0')] + [lambda j=j: a2_1(0, j) for j in range(6)] + [ST('a0 iss'), lambda: pub_hh(2), ST('pub2')] + slots[e3]
    slots[g2].append(ST('a0 arr'))
    slots[g2 - 1] += [lambda: hf_load(1)]
    s1 = g2 + o.get('c1', 3)
    slots[s1] += [lambda: pub_hh(3), lambda: hf_check(1), ST('chk1')]
    put(s1 + 1, [lambda j=j: a2_1(1, j) for j in range(6)], stride=1)
    h2 = g2 + o.get('hf2', 14)
    slots[h2].append(lambda: hf_load(2))
    slots[h2 + o.get('hf2d', 12)].append(lambda: hf_check(2))
    put(h2 + o.get('hf2d', 12) + 1, [lambda j=j: a2_1(2, j) for j in range(6)], stride=1)
    slots[g2 + o.get('hf3', 48)].append(lambda: hf_load(3))
    slots[g2 + 59].append(lambda: hf_check(3))
    put(g2 + 60, [lambda j=j: a2_1(3, j) for j in range(6)], stride=1)
    print('EPE', EPE, 'W2END', W2END, 'stream end', max(busy))

    for q in range(PD): rd1(q)
    for q, (s_, p, i) in enumerate(seq):
        k.wait_vm(f'w1_{3*s_+2}')
        k.wait_lg(f'f{q}')
        for T in range(3):
            d = vr(acc(p, i) + 4*T, 4)
            a(f'v_mfma_f32_16x16x32_bf16 {d}, {vr(w1reg(3*s_+T),4)}, {vr(FR[q%4],4)}, {d if s_ else 0}')
            for f in slots[3*q + T]: f()
        if q == 55 and o.get('st2'): k.stamp('g1 kout')
    k.stamp('g1 done')
    for s_ in range(240, g2):
        for f in slots[s_]: f()
        if s_ == g2 - 2 and o.get('st2'): k.stamp('ep3 done')
    if o.get('st2'): k.stamp('gap done')
    for i in range(4):
        for ksl in range(6):
            if i == 0: k.wait_vm(f'w2_{5*ksl+4}')
            k.wait_vm(f'h{i}_{ksl}')
            for T in range(5):
                d = vr(AC2[i % 2][T], 4)
                a(f'v_mfma_f32_16x16x32_bf16 {d}, {vr(w2reg(ksl*5+T),4)}, {vr(AFR[i][ksl],4)}, {d if ksl else 0}')
                for f in slots[g2 + 30*i + 5*ksl + T]: f()
        if o.get('st2') == 1: k.stamp(f'g2 tile{i}')
    for f in red_write(3): f()
    k.wait_lg('rw'); a('s_barrier')
    for f in red_reads(3) + red_ops(3, True): f()
    k.stamp('g2 done')
    if stamps:
        l = k.lab('st')
        a(f's_cmp_lg_u32 s{S_W}, {o.get("stw", 0)}'); a(f's_cbranch_scc1 {l}')
        a('s_lshl_b32 s68, s2, 8'); a(f's_add_u32 s68, s68, {STAMP}'); a('v_lshrrev_b32 v84, 2, v1')
        a(f'buffer_store_dword v{VST}, v84, {WS}, s68 offen')
        if o.get('dbg'):
            sel = o['dbg']
            a('s_mov_b32 s8, s98'); a('s_mov_b32 s9, s99'); a('s_mov_b32 s10, 256'); a('s_mov_b32 s11, 0x20000')
            a(f'v_readlane_b32 s68, v{VST}, 0'); a('s_not_b32 s68, s68'); a('v_mov_b32 v85, 0'); a('v_writelane_b32 v85, s68, 0')
            for i, st in enumerate(sel):
                a(f'v_readlane_b32 s68, v{VST}, {st}'); a(f'v_writelane_b32 v85, s68, {i+1}')
            a('s_mov_b64 exec, 0xffff')
            a('buffer_atomic_umax v85, v84, s[8:11], 0 offen')
        a.label(l)
    a.label('L_end')
    a('s_endpgm')
    for f in k.deferred: f()
    a.label('L_codeend')
    a('s_endpgm')
    return k

HEADER = open('cdna_kernels/' + NAME + '.s.ref').read().split('; @launch')[0]

def emit(path, stamps=False, opts=None):
    k = gen(stamps, opts)
    out = [HEADER + f'; @launch grid=(256,1,1) block=(512,1,1) lds={LDS_BYTES}\n']
    if stamps: out.append('; STAMPS: ' + '|'.join(k.stamp_names) + '\n')
    out.append('.amdgcn_target "amdgcn-amd-amdhsa--gfx950"\n.text\n')
    out.append(k.a.text())
    out.append('.p2align 10\n.type tab_data,@object\ntab_data:\n')
    nfr = len(k.T)
    data = np.zeros((nfr, 256), dtype=np.uint32)
    for n, i in k.fidx.items(): data[i] = k.T[n].reshape(-1)
    q = data.reshape(-1).view(np.uint64)
    for i in range(0, len(q), 8):
        out.append('.quad ' + ','.join('0x%x' % v for v in q[i:i+8]) + '\n')
    out.append(f'.size tab_data, {nfr*1024}\n')
    out.append(f'''.section .rodata,"a"
.p2align 6
.amdhsa_kernel {KN}
  .amdhsa_next_free_vgpr 256
  .amdhsa_next_free_sgpr 102
  .amdhsa_accum_offset 256
  .amdhsa_group_segment_fixed_size 0
  .amdhsa_kernarg_size 96
  .amdhsa_user_sgpr_count 2
  .amdhsa_user_sgpr_kernarg_segment_ptr 1
  .amdhsa_system_sgpr_workgroup_id_x 1
.end_amdhsa_kernel
''')
    open(path, 'w').write(''.join(out))
    import subprocess
    r = subprocess.run([sys.executable, 'cdna_unwritten_srd_check.py', path], capture_output=True, text=True)
    if r.returncode: print('CHECK FAILED', r.stdout[-1500:], r.stderr[-1500:])
    print(path, 'insts', k.a.ninst, 'nop states', k.a.nops, 'stamps', k.nstamp)

if __name__ == '__main__':
    import json
    opts = json.loads(sys.argv[1]) if len(sys.argv) > 1 else {}
    if len(sys.argv) > 2:
        emit(sys.argv[2], 'stamp' in sys.argv[2], opts)
    else:
        emit('cdna_kernels/' + NAME + '.s', False, opts)
        emit('k_stamp.s', True, opts)
```

```python
import sys, os
sys.path.insert(0, os.path.dirname(os.path.abspath(__file__)))
import numpy as np
from asmlib import Asm
import tables

NAME = 'adaLN_cond__spectral_gfnet__glu_gated_bilinear__prompt'
KN = NAME + '_kernel'

EPOCH = 0x0
MODG = 0x1000
MODP = 0x40000
STAMP = 0x10000
FLG = 0x80000
FH2 = 0x28000
HN1 = 0x60000
HN2 = 0x68000
FHH = 0x1D00000
XP = 1664
NCT = 23
X1 = 0x100000
X2 = X1
H2 = 0x800000
XR = 0xB00000
HH = 0xE00000
W1R = 0x1400000
W2R = 0x1800000
FRB = 0x1E00000
WS_SIZE = 0x2300000
POLL_LIMIT = 200000

L_MOD = 0
L_TAB = 8192
L_FFT = 40960
L_RP = 73728
L_FL = 40960
L_P0 = 61440
L_A = 40960
L_X = 8192
L_RED = 40960
LDS_BYTES = 163840

def vr(a, n=1): return f'v{a}' if n == 1 else f'v[{a}:{a+n-1}]'
def sr(a, n=1): return f's{a}' if n == 1 else f's[{a}:{a+n-1}]'
VST = 5

class K:
    def __init__(self, stamps=False, opts=None):
        self.a = Asm(); self.stamps = stamps; self.o = opts or {}
        self.vm = []; self.lg = []; self.deferred = []; self.seen = set()
        self.nstamp = 0; self.stamp_names = []
        self.T = tables.build()
        self.fidx = {n: i for i, n in enumerate(self.T)}
        self.uid = 0
    def lab(self, p):
        self.uid += 1; return f'L_{p}_{self.uid}'
    def vmem(self, text, tag='x', cond=False):
        self.a(text); self.vm.append((tag, cond)); self.seen.add(tag)
    def wait_vm(self, tag, extra=''):
        assert tag in self.seen or self.o.get('gate'), tag
        idx = max([i for i, (t, c) in enumerate(self.vm) if t == tag], default=None)
        if idx is None:
            if extra: self.a(f's_waitcnt {extra}')
            return
        n = sum(1 for (t, c) in self.vm[idx + 1:] if not c)
        assert n <= 63, n
        self.a(f's_waitcnt vmcnt({n}) {extra}'.strip())
        self.vm = self.vm[idx + 1:]
    def ds(self, text, tag='d'):
        self.a(text); self.lg.append(tag)
    def wait_lg(self, tag):
        idx = max([i for i, t in enumerate(self.lg) if t == tag], default=None)
        if idx is None: return
        n = len(self.lg) - idx - 1
        self.a(f's_waitcnt lgkmcnt({min(n, 15)})')
        self.lg = self.lg[idx + 1:]
    def wait_all(self, extra=''):
        self.a(f's_waitcnt vmcnt(0) {extra}'.strip()); self.vm = []
    def tload(self, dst, name):
        self.a(f'ds_read_b128 {vr(dst,4)}, v1 offset:{L_TAB + 1024*self.fidx[name]}')
    def stamp(self, name=''):
        if self.o.get('st3') and name in ('wm arrived', 'mod published', 'LN1 done', 'fl landed', 'pre gather', 'gather ok', 'P2 prework', 'repack done', 'P3 prework', 'hint1', 'hint2', 'g1 setup', 'ep3 done'): return
        g = self.o.get('gate')
        if g and g[0] == name:
            l = self.lab('gate'); self.a.label(l)
            self.a('s_memrealtime s[96:97]'); self.a('s_waitcnt lgkmcnt(0)'); self.a('s_sub_u32 s96, s96, s98')
            self.a(f's_cmp_lt_u32 s96, {g[1]}'); self.a(f's_cbranch_scc1 {l}')
        if not self.stamps: return
        i = self.nstamp; self.nstamp += 1; self.stamp_names.append(name)
        assert i < 32
        self.a('s_memrealtime s[96:97]'); self.a('s_memtime s[100:101]'); self.a('s_waitcnt lgkmcnt(0)'); self.lg = []
        self.a(f'v_writelane_b32 v{VST}, s96, {i}'); self.a(f'v_writelane_b32 v{VST}, s{S_CNT if self.o.get("cnt") else 100}, {i+32}')

S_X, S_WR, S_WI, S_RP, S_C, S_WM, S_OUT, S_WS = 8, 12, 16, 20, 24, 28, 32, 36
S_TAG, S_W, S_S2, S_CNT, S_X1S, S_X2S, S_P2B, S_K1, S_CT, S_IDX, S_G, S_NT, S_R, S_CD, S_BG, S_BG2 = range(40, 56)
S_RPD = 56
S_X2T = 59
S_BGE, S_BG2E, S_ROT, S_ROT2 = 60, 61, 62, 63
S_TM = 64
S_DM = 66
WREG = 136

DEFAULTS = {'sleep': 4, 'norot': 1, 'b3': [0, 0, 4, 0], 'rpe': 1, 'w2s': 100, 'hx': 0, 'dr1': 1, 'hint': 0, 'bh': 0, 'dr2': 2, 'bud': 8, 'dr3': 2, 'gap': 10, 'al': [235, 251, 276, 310], 'as1': 2}
def gen(stamps=False, opts=None):
    k = K(stamps, opts); a = k.a; o = k.o
    for kk, vv in DEFAULTS.items(): o.setdefault(kk, vv)
    WS = sr(S_WS, 4)
    a.raw(f'.globl {KN}\n.p2align 8\n.type {KN},@function\n{KN}:')
    a('s_cmp_ge_u32 s2, 256')
    a('s_cbranch_scc1 L_end')
    if o.get('gate'): a('s_memrealtime s[98:99]')
    a('s_load_dwordx16 s[68:83], s[0:1], 0')
    a('s_load_dwordx8 s[84:91], s[0:1], 64')
    a('s_getpc_b64 s[4:5]')
    a.label('L_pc')
    a('v_lshrrev_b32 v24, 3, v0')
    a('v_lshlrev_b32 v25, 1, v24')
    a('v_mul_u32_u24 v24, 7680, v24')
    a('v_and_b32 v26, 7, v0')
    a('v_lshl_add_u32 v24, v26, 4, v24')
    a('v_lshrrev_b32 v22, 6, v0')
    a(f'v_readfirstlane_b32 s{S_W}, v22')
    a(f's_mov_b32 s{S_IDX}, s2')
    a('s_and_b32 s94, s2, 3'); a('s_mul_i32 s93, s94, 320'); a(f's_mul_i32 s95, s94, {160*7680}')
    a(f's_lshr_b32 s94, s{S_IDX}, 2'); a('s_lshl_b32 s94, s94, 7'); a('s_add_u32 s95, s95, s94')
    a(f's_and_b32 s{S_K1}, s2, 7'); a(f's_lshr_b32 s{S_CT}, s2, 3')
    a('v_mov_b32 v23, v0')
    a('v_and_b32 v0, 63, v0')
    a('v_lshlrev_b32 v1, 4, v0')
    a('v_lshrrev_b32 v2, 4, v0')
    a('v_and_b32 v3, 15, v0')
    if stamps: a(f'v_mov_b32 v{VST}, 0')
    def srd(dst, src, size):
        a(f's_mov_b32 s{dst}, s{src}'); a(f's_mov_b32 s{dst+1}, s{src+1}')
        a(f's_mov_b32 s{dst+2}, {size}'); a(f's_mov_b32 s{dst+3}, 0x20000')
    a('s_waitcnt lgkmcnt(0)')
    srd(S_WM, 84, 640 * 7680); srd(S_C, 82, 1280)
    lnu = k.lab('nu')
    a('s_cmp_ge_u32 s2, 240'); a(f's_cbranch_scc1 {lnu}')
    for i in range(3):
        k.vmem(f'buffer_load_dwordx4 {vr(32+4*i,4)}, v24, {sr(S_WM,4)}, s95 offen nt', 'wm', cond=True)
        if i < 2: a(f's_add_u32 s95, s95, {64*7680}')
        if i == 1:
            a(f's_cmp_lt_u32 s{S_W}, 4'); a(f's_cselect_b32 s95, s95, {640*7680}')
    for i in range(3):
        k.vmem(f'buffer_load_ushort v{27+i}, v25, {sr(S_C,4)}, s93 offen offset:{128*i}', 'wm', cond=True)
    a('s_barrier')
    a.label(lnu)
    a(f's_load_dword s{S_TAG}, s[90:91], {EPOCH}')
    if o.get('dbg'): a('s_mov_b64 s[98:99], s[88:89]')
    k.stamp('start')
    a(f's_and_b32 s3, s{S_K1}, 3'); a('s_lshl_b32 s3, s3, 2'); a(f's_lshr_b32 s{S_G}, s{S_CT}, 3')
    a(f's_lshl_b32 s{S_R}, s{S_K1}, 2'); a(f's_add_u32 s{S_R}, s{S_R}, s{S_G}'); a(f's_add_u32 s{S_G}, s{S_G}, s3')
    a(f's_and_b32 s{S_CD}, s{S_CT}, 7')
    a(f's_lshr_b32 s3, s{S_K1}, 2'); a('s_lshl_b32 s3, s3, 3'); a(f's_add_u32 s{S_NT}, s{S_CD}, s3')
    if o.get('map1') == 8:
        a(f's_and_b32 s3, s{S_K1}, 1'); a('s_lshl_b32 s3, s3, 3'); a(f's_lshr_b32 s{S_G}, s{S_CT}, 2'); a(f's_add_u32 s{S_G}, s{S_G}, s3')
        a(f's_lshr_b32 s3, s{S_K1}, 1'); a('s_lshl_b32 s3, s3, 2'); a(f's_and_b32 s{S_NT}, s{S_CT}, 3'); a(f's_add_u32 s{S_NT}, s{S_NT}, s3')
    if o.get('map2') == 8:
        a(f's_and_b32 s3, s{S_K1}, 3'); a('s_lshl_b32 s3, s3, 3'); a(f's_lshr_b32 s{S_R}, s{S_CT}, 2'); a(f's_add_u32 s{S_R}, s{S_R}, s3')
        a(f's_lshr_b32 s3, s{S_K1}, 2'); a('s_lshl_b32 s3, s3, 2'); a(f's_and_b32 s{S_CD}, s{S_CT}, 3'); a(f's_add_u32 s{S_CD}, s{S_CD}, s3')
    HS = o.get('hs', 1); FD = o.get('fd', 1)
    if HS:
        a(f's_lshl_b32 s{S_R}, s{S_G}, 1'); a(f's_lshr_b32 s3, s{S_NT}, 3'); a(f's_add_u32 s{S_R}, s{S_R}, s3'); a(f's_and_b32 s{S_CD}, s{S_NT}, 7')
    a(f's_lshl_b32 s{S_S2}, s{S_G}, 4'); a(f's_add_u32 s{S_S2}, s{S_S2}, s{S_NT}'); a(f's_mov_b32 s{S_CNT}, 0')
    srd(S_X, 68, 2048 * 1280)
    a('v_mul_u32_u24 v4, 320, v2'); a('v_lshl_add_u32 v4, v3, 2, v4')
    a(f's_lshl_b32 s3, s{S_CT}, 10'); a(f's_lshl_b32 s6, s{S_W}, 7'); a('s_add_u32 s3, s3, s6'); a('s_min_u32 s95, s3, L_codeend-L_pc')
    def ctouch(r):
        a(f'v_mov_b32 v{r}, s95'); k.vmem(f'global_load_dword v{r}, v{r}, s[4:5] sc1', 'warm')
    ctouch(86)
    CT = o.get('ct', 0)
    a(f's_lshl_b32 s3, s{S_W}, 8'); a(f's_add_u32 s3, s3, s{S_S2}'); a('s_mul_i32 s3, s3, 1280')
    for j in range(5):
        k.vmem(f'buffer_load_dword v{10+j}, v4, {sr(S_X,4)}, s3 offen offset:{64*j} nt', 'x')
    def i_tab(half, tag):
        a(f's_lshl_b32 s3, s{S_W}, 11')
        a(f's_add_u32 s6, s4, tab_data-L_pc+{16384*half}'); a('s_addc_u32 s7, s5, 0'); a('s_add_u32 s6, s6, s3'); a('s_addc_u32 s7, s7, 0')
        a(f's_add_u32 m0, s3, {L_TAB + 16384*half}')
        for c in range(2): k.vmem(f'global_load_lds_dwordx4 v1, s[6:7] offset:{1024*c}', tag)
    srd(S_WR, 70, 2048 * 642); srd(S_WI, 72, 2048 * 642)
    def i_fl():
        a(f's_lshr_b32 s68, s{S_CT}, 2'); a('s_lshl_b32 s68, s68, 4'); a(f's_and_b32 s69, s{S_CT}, 3'); a('s_lshl_b32 s69, s69, 8')
        a('s_add_u32 s68, s68, s69'); a(f's_add_u32 s68, s68, s{S_K1}')
        a(f's_lshr_b32 s69, s{S_W}, 2'); a('s_lshl_b32 s69, s69, 3'); a('s_add_u32 s68, s68, s69')
        a(f's_bfe_u32 s69, s{S_W}, 0x10001'); a('s_lshl_b32 s69, s69, 10'); a('s_add_u32 s68, s68, s69')
        a(f's_and_b32 s69, s{S_W}, 1'); a('s_lshl_b32 s69, s69, 7'); a('s_add_u32 s68, s68, s69')
        a('s_mul_i32 s68, s68, 642'); a('s_andn2_b32 s68, s68, 15')
        a(f's_lshl_b32 s3, s{S_W}, 10'); a(f's_add_u32 m0, s3, {L_FL}')
        a('s_mov_b32 exec_hi, 0x3ff')
        k.vmem(f'buffer_load_dwordx4 v1, {sr(S_WR,4)}, s68 offen {o.get("flp", "nt")} lds', 'fl')
        a(f's_add_u32 m0, s3, {L_FL + 8192}')
        k.vmem(f'buffer_load_dwordx4 v1, {sr(S_WI,4)}, s68 offen {o.get("flp", "nt")} lds', 'fl')
        a('s_mov_b32 exec_hi, -1')
    i_fl()
    i_tab(0, 'fl')
    srd(S_WS, 90, WS_SIZE); srd(S_OUT, 86, 2048 * 1280)
    a(f's_cmp_lt_u32 s{S_W}, 4')
    a(f's_cselect_b32 s{S_RP}, s76, s78'); a(f's_cselect_b32 s{S_RP+1}, s77, s79')
    a('s_cmp_lt_u32 s2, 160')
    a(f's_cselect_b32 s{S_RP}, s{S_RP}, s80'); a(f's_cselect_b32 s{S_RP+1}, s{S_RP+1}, s81')
    a(f's_mov_b32 s{S_RP+2}, {640*3072}'); a(f's_mov_b32 s{S_RP+3}, 0x20000')
    def only(cmp, body):
        l = k.lab('sk'); a(cmp); a(f's_cbranch_scc0 {l}'); body(); a.label(l)
    i_tab(1, 'fl')
    S_H2W = 79
    def h2_fill():
        a(f's_mul_i32 s{S_H2W}, s{S_G}, 163840'); a(f's_lshl_b32 s3, s{S_NT}, 9'); a(f's_add_u32 s{S_H2W}, s{S_H2W}, s3'); a(f's_add_u32 s{S_H2W}, s{S_H2W}, {H2}')
        a(f's_lshl_b32 s68, s{S_W}, 14'); a(f's_add_u32 s68, s68, s{S_H2W}')
        for i in range(4): a(f'v_mov_b32 v{200+i}, -1')
        if HS == 5: return
        a('v_lshrrev_b32 v44, 5, v0'); a('v_mul_u32_u24 v44, 7680, v44'); a('v_add_u32 v44, v44, v1')
        k.vmem(f'buffer_store_dwordx4 v[200:203], v44, {WS}, s68 offen sc1', 'fill')
        a(f's_add_u32 s68, s68, {16*8192}'); a(f's_cmp_lt_u32 s{S_W}, 2'); a(f's_cselect_b32 s68, s68, {WS_SIZE}')
        k.vmem(f'buffer_store_dwordx4 v[200:203], v44, {WS}, s68 offen sc1', 'fill')
    FP0 = o.get('fp0', 2)
    if FP0 == 0: h2_fill()
    RPE = o.get('rpe', 1)
    def rp_start():
        RA = 220; L4 = 65536
        lB, lJ = k.lab('rpB'), k.lab('rpJ')
        a('v_bfe_u32 v224, v0, 2, 2'); a('v_lshl_add_u32 v224, v2, 3, v224'); a('v_and_b32 v225, 3, v0')
        a('s_cmp_ge_u32 s2, 160'); a(f's_cbranch_scc1 {lB}')
        for c in range(3):
            a(f'v_add_u32 v44, {64*c}, v0'); a('v_mul_u32_u24 v45, 43691, v44'); a('v_lshrrev_b32 v45, 20, v45')
            a('v_mul_u32_u24 v46, 24, v45'); a('v_sub_u32 v46, v44, v46'); a('v_mul_u32_u24 v45, 3072, v45')
            a(f'v_lshl_add_u32 v{RA+c}, v46, 4, v45')
            if c: a(f'v_subrev_u32 v{RA+c}, {1024*c}, v{RA+c}')
        a(f's_mov_b32 s91, s{S_CT}')
        a(f's_and_b32 s92, s{S_W}, 3'); a('s_lshl_b32 s92, s92, 3'); a('s_lshl_b32 s93, s91, 5'); a('s_add_u32 s92, s92, s93')
        a('s_mul_i32 s92, s92, 3072'); a(f's_mul_i32 s93, s{S_K1}, 384'); a('s_add_u32 s92, s92, s93')
        a(f's_lshl_b32 s93, s{S_K1}, 3'); a(f's_add_u32 s93, s93, s{S_W}'); a('s_mul_i32 s93, s93, 20'); a('s_add_u32 s93, s93, s91')
        a('s_mul_i32 s93, s93, 3072')
        for c in range(3): a(f's_add_u32 s{S_RPD+c}, s93, {W1R + 1024*c}')
        a(f's_mul_i32 s3, s{S_W}, 48'); a(f's_add_u32 s3, s3, {L4}')
        a('v_mul_u32_u24 v224, 384, v224'); a('v_add_u32 v224, s3, v224'); a('v_lshl_add_u32 v216, v225, 3, v224')
        a('v_add_u32 v217, 12288, v216')
        a('v_and_b32 v47, 1, v0'); a('v_lshl_add_u32 v47, v47, 3, v224'); a('v_lshrrev_b32 v225, 1, v225'); a('v_mul_u32_u24 v225, 12288, v225')
        a('v_add3_u32 v218, v47, v225, 32'); a('v_mov_b32 v219, 1536')
        a(f's_branch {lJ}')
        a.label(lB)
        a(f's_mul_i32 s92, s{S_W}, 192')
        for c in range(3):
            a(f'v_add_u32 v44, {64*c}, v0'); a('v_add_u32 v44, s92, v44')
            a('v_mul_u32_u24 v45, 52429, v44'); a('v_lshrrev_b32 v45, 21, v45')
            a('v_mul_u32_u24 v46, 40, v45'); a('v_sub_u32 v46, v44, v46')
            a('v_lshrrev_b32 v47, 5, v45'); a('v_lshlrev_b32 v47, 30, v47')
            a('v_mul_u32_u24 v45, 1280, v45'); a('v_add_u32 v45, v45, v47')
            a(f'v_lshl_add_u32 v{RA+c}, v46, 4, v45')
            if c: a(f'v_subrev_u32 v{RA+c}, {1024*c}, v{RA+c}')
        a('s_sub_u32 s90, s2, 160'); a('s_lshr_b32 s91, s90, 1'); a('s_and_b32 s90, s90, 1')
        a(f's_mul_i32 s92, s91, {32*1280}'); a('s_mul_i32 s3, s90, 640'); a('s_add_u32 s92, s92, s3')
        for c in range(3):
            a(f's_mul_i32 s68, s{S_W}, 3'); a(f's_add_u32 s68, s68, {c}')
            a('s_mul_i32 s69, s68, 52'); a('s_lshr_b32 s69, s69, 8')
            a('s_mul_i32 s80, s69, 5'); a('s_sub_u32 s80, s68, s80')
            a('s_lshl_b32 s81, s90, 2'); a('s_add_u32 s69, s69, s81'); a('s_mul_i32 s69, s69, 48'); a('s_add_u32 s69, s69, s91')
            a('s_mul_i32 s69, s69, 5'); a('s_add_u32 s69, s69, s80'); a('s_lshl_b32 s69, s69, 10'); a(f's_add_u32 s69, s69, {W2R}')
            a('s_cmp_lt_u32 s68, 20'); a(f's_cselect_b32 s{S_RPD+c}, s69, {WS_SIZE}')
        a(f's_mul_i32 s3, s{S_W}, 96'); a(f's_add_u32 s3, s3, {L4}')
        a('v_mul_u32_u24 v224, 640, v224'); a('v_add_u32 v224, s3, v224'); a('v_lshl_add_u32 v216, v225, 3, v224')
        a('v_add_u32 v217, 32, v216'); a('v_add_u32 v218, 64, v216'); a('v_mov_b32 v219, 2560')
        a.label(lJ)
        for c in range(3): a(f'v_add_u32 v{224+c}, v{216+c}, v219')
        if RPE != 4: rp_dma()
    def rp_dma():
        RA = 220; L4 = 65536
        a(f's_mul_i32 s3, s{S_W}, 3072')
        a(f's_add_u32 m0, s3, {L4}')
        for c in range(3): k.vmem(f'buffer_load_dwordx4 v{RA+c}, {sr(S_RP,4)}, s92 offen offset:{1024*c} nt lds', 'rp', cond=(RPE == 3))
    RPV = 160
    def rp_tr():
        for c in range(3):
            a(f'ds_read_b64_tr_b16 {vr(RPV+4*c,2)}, v{216+c}'); a(f'ds_read_b64_tr_b16 {vr(RPV+4*c+2,2)}, v{224+c}')
    def rp_stores():
        for c in range(3): k.vmem(f'buffer_store_dwordx4 {vr(RPV+4*c,4)}, v1, {WS}, s{S_RPD+c} offen sc1', 'rps')
    if RPE == 1: rp_start()
    if RPE == 3: only('s_cmp_ge_u32 s2, 80', rp_start)
    a('s_waitcnt lgkmcnt(0)')
    a(f's_add_u32 s{S_TAG}, s{S_TAG}, 1')
    def p0(lo, n):
        lnu = k.lab('nu')
        a(f's_sub_u32 s3, s2, {lo}'); a(f's_cmp_ge_u32 s3, {n}'); a(f's_cbranch_scc1 {lnu}')
        a('v_and_b32 v52, 7, v0'); a('v_lshlrev_b32 v52, 5, v52'); a('v_lshl_add_u32 v52, v2, 3, v52')
        a(f's_lshl_b32 s3, s{S_W}, 8'); a(f's_add_u32 s3, s3, {L_P0}'); a('v_add_u32 v52, s3, v52')
        a('s_and_b32 s68, s2, 3'); a('s_mul_i32 s68, s68, 30720'); a(f's_lshr_b32 s69, s2, 2'); a('s_lshl_b32 s69, s69, 9')
        a('s_add_u32 s68, s68, s69'); a(f's_add_u32 s68, s68, {MODP}')
        a(f'v_lshlrev_b32 v53, 2, v0'); a(f'v_add_u32 v53, {L_P0}, v53'); a('v_lshlrev_b32 v54, 3, v0')
        save = list(k.vm)
        k.wait_vm('wm')
        k.vm = save
        k.stamp('wm arrived') if lo == 0 else None
        ACC = 100; C = 27; T = 48; WV = 32
        for i in range(3):
            a(f'v_lshlrev_b32 v{C+i}, 16, v{C+i}'); a(f'v_mul_f32 v{T+i}, 0xbfb8aa3b, v{C+i}')
        for i in range(3): a(f'v_exp_f32 v{T+i}, v{T+i}')
        for i in range(3): a(f'v_add_f32 v{T+i}, 1.0, v{T+i}')
        for i in range(3): a(f'v_rcp_f32 v{T+i}, v{T+i}')
        for i in range(3): a(f'v_mul_f32 v{T+i}, v{T+i}, v{C+i}')
        for i in range(3): a(f'v_cvt_pk_bf16_f32 v{C+i}, v{T+i}, 0')
        for i in range(3): a(f'v_lshlrev_b32 v{T+i}, 16, v{C+i}')
        for i in range(3):
            for q in range(4):
                w = WV + 4*i + q
                c0, c1 = (0, 0) if i == 0 else (f'v{ACC+2*q}', f'v{ACC+2*q+1}')
                a(f'v_dot2_f32_bf16 v{ACC+2*q}, v{w}, v{C+i}, {c0}'); a(f'v_dot2_f32_bf16 v{ACC+2*q+1}, v{w}, v{T+i}, {c1}')
        for j in range(4): a(f'v_permlane32_swap_b32 v{ACC+j}, v{ACC+j+4}')
        for j in range(4): a(f'v_add_f32 v{ACC+j}, v{ACC+j}, v{ACC+j+4}')
        for j in range(2): a(f'v_permlane16_swap_b32 v{ACC+j}, v{ACC+j+2}')
        for j in range(2): a(f'v_add_f32 v{ACC+j}, v{ACC+j}, v{ACC+j+2}')
        for j in range(2): a(f'v_add_f32_dpp v{ACC+j}, v{ACC+j}, v{ACC+j} row_ror:8 row_mask:0xf bank_mask:0xf')
        a(f'ds_write_b64 v52, {vr(ACC,2)}')
        a('s_waitcnt lgkmcnt(0)')
        a('s_barrier')
        a(f's_cmp_lg_u32 s{S_W}, 0'); a(f's_cbranch_scc1 {lnu}')
        for q in range(4): a(f'ds_read2st64_b32 {vr(56+2*q,2)}, v53 offset0:{2*q} offset1:{2*q+1}')
        a('s_waitcnt lgkmcnt(0)')
        a('v_pk_add_f32 v[56:57], v[56:57], v[58:59]'); a('v_pk_add_f32 v[60:61], v[60:61], v[62:63]')
        a('v_pk_add_f32 v[56:57], v[56:57], v[60:61]'); a('v_add_f32 v56, v56, v57')
        a(f'v_mov_b32 v57, s{S_TAG}')
        k.vmem(f'buffer_store_dwordx2 v[56:57], v54, {WS}, s68 offen sc1', 'st', cond=True)
        k.stamp('mod published') if lo == 0 else None
        a.label(lnu)
    p0(0, 80)
    if RPE in (2, 4): rp_start()
    if RPE == 3:
        only('s_cmp_lt_u32 s2, 80', rp_start)
        k.vm = [e for e in k.vm if e[0] != 'rp'] + [('rp', False)] * 3
    S_HHB = S_IDX
    if FP0 == 1: h2_fill()
    a(f's_lshr_b32 s80, s{S_W}, 2'); a(f's_and_b32 s81, s{S_W}, 3')
    a(f's_lshl_b32 s{S_HHB}, s{S_G}, 3'); a(f's_add_u32 s{S_HHB}, s{S_HHB}, s80'); a(f's_mul_i32 s{S_HHB}, s{S_HHB}, 49152')
    a(f's_mul_i32 s68, s{S_NT}, 3072'); a(f's_add_u32 s{S_HHB}, s{S_HHB}, s68'); a('s_mul_i32 s68, s81, 768')
    a(f's_add_u32 s{S_HHB}, s{S_HHB}, s68'); a(f's_add_u32 s{S_HHB}, s{S_HHB}, {HH}')
    def hh_fill(lo=0, hi=4):
        if lo >= hi: return
        a('s_mov_b32 exec_hi, 0xffff')
        for p in range(lo, hi):
            a(f's_add_u32 s3, s{S_HHB}, {p*2*49152}')
            k.vmem(f'buffer_store_dwordx4 v[200:203], v1, {WS}, s3 offen sc1', 'fill')
        a('s_mov_b32 exec_hi, -1')
    if HS == 4: hh_fill()
    a('v_lshlrev_b32 v87, 1, v4')
    a('v_lshrrev_b32 v85, 3, v3'); a('v_sub_u32 v85, v3, v85')
    a(f's_mov_b32 s{S_TM}, 0x80808080'); a(f's_mov_b32 s{S_TM+1}, 0x80808080'); a(f's_not_b64 {sr(S_DM,2)}, {sr(S_TM,2)}')
    a(f's_mul_i32 s3, s{S_S2}, {XP}')
    a(f's_add_u32 s{S_X1S}, s3, {X1}'); S_TG2 = S_X2S; S_X2 = S_X1S; a(f's_xor_b32 s{S_TG2}, s{S_TAG}, 0x80000000')
    a(f's_cmp_lt_u32 s{S_W}, 7'); a(f's_cselect_b32 s3, 512, 0'); a(f's_add_u32 s{S_X2T}, s{S_X2}, s3')
    a(f's_mov_b32 s3, {512*XP}'); a('v_mul_lo_u32 v6, v2, s3'); a('v_lshl_add_u32 v6, v3, 2, v6')
    a(f's_lshl_b32 s3, s{S_W}, 6'); a('v_add_u32 v6, s3, v6'); a(f'v_add_u32 v7, {256*XP}, v6')
    a(f's_mul_i32 s3, s{S_W}, {2*XP}'); a(f'v_mul_u32_u24 v9, {32*XP}, v2'); a('v_lshl_add_u32 v8, v3, 2, s3')
    a('v_add_u32 v9, v9, v8'); a(f'v_mul_u32_u24 v44, {64*XP}, v2'); a('v_add_u32 v8, v8, v44')
    a(f's_mul_i32 s{S_P2B}, s{S_K1}, {256*XP}'); a(f's_lshl_b32 s3, s{S_CT}, 6'); a(f's_add_u32 s{S_P2B}, s{S_P2B}, s3')
    a(f's_lshl_b32 s{S_BG}, s{S_NT}, 2'); a(f's_and_b32 s3, s{S_W}, 3'); a(f's_add_u32 s{S_BG}, s{S_BG}, s3'); a(f's_lshl_b32 s{S_BG}, s{S_BG}, 1')
    a(f's_lshr_b32 s3, s{S_W}, 2'); a(f's_add_u32 s{S_BG}, s{S_BG}, s3'); a(f's_mul_i32 s{S_BG}, s{S_BG}, 30720'); a(f's_add_u32 s{S_BG}, s{S_BG}, {W1R}')
    a(f's_lshl_b32 s{S_BG2}, s{S_CD}, 3'); a(f's_add_u32 s{S_BG2}, s{S_BG2}, s{S_W}'); a(f's_mul_i32 s{S_BG2}, s{S_BG2}, 30720'); a(f's_add_u32 s{S_BG2}, s{S_BG2}, {W2R}')
    a(f's_lshr_b32 s3, s{S_CT}, 3'); a('s_mul_i32 s68, s3, 5'); a('s_lshr_b32 s68, s68, 1'); a(f's_add_u32 s{S_ROT}, s68, s{S_CD}')
    a(f's_cmp_ge_u32 s{S_ROT}, 10'); a('s_cselect_b32 s68, 10, 0'); a(f's_sub_u32 s{S_ROT}, s{S_ROT}, s68')
    a('s_mul_i32 s68, s3, 3'); a('s_lshr_b32 s68, s68, 1'); a(f's_add_u32 s{S_ROT2}, s68, s{S_CD}')
    a(f's_cmp_ge_u32 s{S_ROT2}, 6'); a('s_cselect_b32 s68, 6, 0'); a(f's_sub_u32 s{S_ROT2}, s{S_ROT2}, s68')
    if o.get('norot'): a(f's_mov_b32 s{S_ROT}, 0'); a(f's_mov_b32 s{S_ROT2}, 0')
    a(f's_add_u32 s{S_BGE}, s{S_BG}, 30720'); a(f's_mul_i32 s68, s{S_ROT}, 3072'); a(f's_add_u32 s{S_BG}, s{S_BG}, s68')
    a(f's_add_u32 s{S_BG2E}, s{S_BG2}, 30720'); a(f's_mul_i32 s68, s{S_ROT2}, 5120'); a(f's_add_u32 s{S_BG2}, s{S_BG2}, s68')
    bgs = {'w1': 0, 'w2': 0, 'pf': 0}
    def w1reg(j): return 136 + 12*((j // 3) % 4) + 4*(j % 3)
    W2MAP = [184 + 4*j for j in range(16)] + [116, 120, 124] + [160, 164, 168] + [20 + 4*j for j in range(6)] + [44, 48]
    def w2reg(j): return W2MAP[j]
    def wload(kind, cond=False):
        j = bgs[kind]; bgs[kind] = j + 1
        assert j < 30
        if kind == 'w1':
            k.vmem(f'buffer_load_dwordx4 {vr(w1reg(j),4)}, v1, {WS}, s{S_BG} offen offset:{1024*(j%3)} sc1', f'w1_{j}', cond)
            if j % 3 == 2:
                a(f's_add_u32 s{S_BG}, s{S_BG}, 3072'); a(f's_cmp_ge_u32 s{S_BG}, s{S_BGE}'); a('s_cselect_b32 s3, 30720, 0'); a(f's_sub_u32 s{S_BG}, s{S_BG}, s3')
        else:
            T = j % 5
            if not o.get('now2'): k.vmem(f'buffer_load_dwordx4 {vr(w2reg(j),4)}, v1, {WS}, s{S_BG2} offen offset:{1024*(T%4)} sc1', f'w2_{j}', cond)
            if T == 3: a(f's_add_u32 s{S_BG2}, s{S_BG2}, 4096')
            if T == 4:
                a(f's_add_u32 s{S_BG2}, s{S_BG2}, 1024'); a(f's_cmp_ge_u32 s{S_BG2}, s{S_BG2E}'); a('s_cselect_b32 s3, 30720, 0'); a(f's_sub_u32 s{S_BG2}, s{S_BG2}, s3')
    def bg(kind, n, cond=False):
        for _ in range(n):
            if bgs['pf'] >= 28: return
            wload('w1' if bgs['pf'] < 12 else 'w2', cond); bgs['pf'] += 1
    def bgw(n):
        NW1 = o.get('nw1', 0)
        n = min(n, 28 - bgs['pf'])
        m = max(0, min(n, NW1 - bgs['pf']))
        if m > 0: only(f's_cmp_lt_u32 s{S_CT}, {NCT}', lambda: bg('w1', m, True))
        bg('w1', n - m)
    def layernorm(X, t0, t1):
        a(f'v_readfirstlane_b32 s68, v{X}')
        for i in range(10): a(f'v_subrev_f32 v{X+i}, s68, v{X+i}')
        a(f'v_add_f32 v{t0}, v{X}, v{X+1}'); a(f'v_mul_f32 v{t1}, v{X}, v{X}')
        a(f'v_fmac_f32 v{t1}, v{X+1}, v{X+1}')
        for i in range(2, 10):
            a(f'v_add_f32 v{t0}, v{t0}, v{X+i}'); a(f'v_fmac_f32 v{t1}, v{X+i}, v{X+i}')
        for m in ('quad_perm:[1,0,3,2] row_mask:0xf', 'quad_perm:[2,3,0,1] row_mask:0xf', 'row_ror:4 row_mask:0xf', 'row_ror:8 row_mask:0xf',
                  'row_bcast:15 row_mask:0xa', 'row_bcast:31 row_mask:0xc'):
            for t in (t0, t1): a(f'v_add_f32_dpp v{t}, v{t}, v{t} {m} bank_mask:0xf')
        a(f'v_readlane_b32 s68, v{t0}, 63'); a(f'v_readlane_b32 s69, v{t1}, 63')
        a(f'v_mov_b32 v{t0}, 0x3acccccd')
        a(f'v_mul_f32 v{t1}, s69, v{t0}'); a(f'v_mul_f32 v{t0}, s68, v{t0}')
        a(f'v_fma_f32 v{t1}, -v{t0}, v{t0}, v{t1}')
        a(f'v_max_f32 v{t1}, 0, v{t1}'); a(f'v_add_f32 v{t1}, 0x3727c5ac, v{t1}')
        a(f'v_rsq_f32 v{t1}, v{t1}')
        a(f'v_mul_f32 v{t0}, v{t0}, v{t1}')
        for i in range(10): a(f'v_fma_f32 v{X+i}, v{X+i}, v{t1}, -v{t0}')
    def unpack(dst_lo, dst_hi, src):
        if dst_lo == src:
            a(f'v_and_b32 v{dst_hi}, 0xffff0000, v{src}'); a(f'v_lshlrev_b32 v{dst_lo}, 16, v{src}')
        else:
            a(f'v_lshlrev_b32 v{dst_lo}, 16, v{src}'); a(f'v_and_b32 v{dst_hi}, 0xffff0000, v{src}')
    def ematrix(dst, inv, t0):
        t1, t2, t3 = t0 + 1, t0 + 2, t0 + 3
        for e in range(2):
            a(f'v_lshrrev_b32 v{t0}, 1, v3'); a(f'v_lshl_add_u32 v{t1}, v2, 1, {e}')
            kk, ss = (t1, t0) if inv else (t0, t1)
            a(f'v_lshl_add_u32 v{ss}, v{ss}, 8, s{S_S2}')
            a(f'v_mul_u32_u24 v{t0}, v{kk}, v{ss}')
            a(f'v_and_b32 v{t1}, 1, v3')
            a(f'v_mul_u32_u24 v{t1}, {1536 if inv else 512}, v{t1}')
            a(f'v_add_u32 v{t0}, v{t0}, v{t1}'); a(f'v_and_b32 v{t0}, 2047, v{t0}')
            a(f'v_cvt_f32_u32 v{t0}, v{t0}'); a(f'v_mul_f32 v{t0}, 0x3a000000, v{t0}')
            a(f'v_cos_f32 v{t2}, v{t0}'); a(f'v_sin_f32 v{t3}, v{t0}')
            a(f'v_cvt_pk_bf16_f32 v{dst+e}, v{t2}, {"-" if inv else ""}v{t3}')
    def tagcheck(regs, tmp, mask, S_TAG=S_TAG):
        if len(regs) == 1:
            a(f'v_cmp_ne_u32 vcc, s{S_TAG}, v{regs[0]}')
        else:
            a(f'v_xor_b32 v{tmp}, s{S_TAG}, v{regs[0]}')
            for t in regs[1:]: a(f'v_bitop3_b32 v{tmp}, v{tmp}, v{t}, s{S_TAG} bitop3:0xf6')
            a(f'v_cmp_ne_u32 vcc, 0, v{tmp}')
        if mask: a(f's_and_b64 vcc, vcc, {sr(S_TM,2)}')
    def checked(loads, tag, regs, tmp, mask=False, extra='', each=None, S_TAG=S_TAG):
        k.wait_vm(tag, extra)
        rt, ok = k.lab('rt'), k.lab('ok')
        tagcheck(regs, tmp, mask, S_TAG)
        a(f's_cbranch_{"scc1" if mask else "vccnz"} {rt}')
        a.label(ok)
        def retry():
            a.label(rt)
            a(f's_add_u32 s{S_CNT}, s{S_CNT}, 1'); a(f's_cmp_gt_u32 s{S_CNT}, {POLL_LIMIT}'); a('s_cbranch_scc1 L_end')
            if each and o.get('focus', 1):
                a(f's_sleep {o.get("fsleep", 1)}')
                for r, ld in each:
                    sk = k.lab('sk')
                    a(f'v_cmp_ne_u32 vcc, s{S_TAG}, v{r}'); a(f's_and_b64 vcc, vcc, {sr(S_TM,2)}'); a(f's_cbranch_scc0 {sk}')
                    a(ld); a.label(sk)
            else:
                a(f's_sleep {o.get("sleep", 4)}')
                loads()
            a('s_waitcnt vmcnt(0)')
            tagcheck(regs, tmp, mask, S_TAG)
            a(f's_cbranch_{"scc1" if mask else "vccnz"} {rt}')
            a(f's_branch {ok}')
        k.deferred.append(retry)
    def one_lane_store(off_sgpr_or_imm, tmp):
        a(f'v_mov_b32 v{tmp}, 0'); a(f'v_mov_b32 v{tmp+1}, s{S_TAG}'); a('s_mov_b64 exec, 1')
        k.vmem(f'buffer_store_dword v{tmp+1}, v{tmp}, {WS}, {off_sgpr_or_imm} offen sc1', 'st', cond=True)
        a('s_mov_b64 exec, -1')
    EM = 18
    ematrix(EM, False, 44)
    P1P = 672
    LA_LO, LA_HI, LA_RD = 15, 16, 17
    a(f's_lshr_b32 s68, s{S_W}, 1'); a(f's_mul_i32 s68, s68, {P1P*4}'); a(f's_and_b32 s69, s{S_W}, 1'); a('s_lshl_b32 s69, s69, 2')
    a('s_add_u32 s68, s68, s69'); a(f's_add_u32 s68, s68, {L_FFT}')
    a(f'v_add_u32 v{LA_LO}, s68, v87')
    a(f's_add_u32 s69, s68, {520*4}'); a(f'v_sub_u32 v{LA_HI}, s69, v87')
    a(f'v_mul_u32_u24 v{LA_RD}, {P1P*4}, v2'); a(f'v_lshl_add_u32 v{LA_RD}, v85, 3, v{LA_RD}')
    a(f's_mul_i32 s68, s{S_W}, 112'); a(f's_add_u32 s68, s68, {L_FFT}'); a(f'v_add_u32 v{LA_RD}, s68, v{LA_RD}')
    a('v_bfe_u32 v20, v0, 3, 1'); a('v_lshrrev_b32 v44, 5, v0'); a('v_lshl_add_u32 v20, v44, 1, v20'); a('v_mul_u32_u24 v20, 30720, v20')
    a('v_and_b32 v21, 7, v0'); a('v_and_b32 v45, 1, v2'); a('v_lshl_add_u32 v21, v45, 3, v21')
    a('v_lshl_add_u32 v20, v21, 4, v20')
    a(f's_mul_i32 s70, s{S_W}, 1280'); a(f's_add_u32 s70, s70, {MODP}')
    a(f's_mul_i32 s3, s{S_W}, 320'); a('v_lshl_add_u32 v21, v21, 2, s3'); a('v_lshl_add_u32 v21, v44, 1, v21')
    a(f's_cmp_lt_u32 s{S_W}, 4'); a('s_cselect_b32 s71, 0, 1.0')
    a('s_sub_u32 s72, s2, 240'); a('s_lshl_b32 s72, s72, 3'); a(f's_add_u32 s72, s72, s{S_W}')
    a('s_sub_u32 s3, s72, 40'); a('s_cmp_lt_u32 s3, 20'); a('s_cselect_b32 s73, 1.0, 0')
    a('s_lshl_b32 s74, s72, 8'); a(f's_add_u32 s74, s74, {MODP + 10240}'); a('s_lshl_b32 s75, s72, 7'); a(f's_add_u32 s75, s75, {MODG}')
    a(f's_mul_i32 s3, s{S_W}, 112'); a(f's_lshl_b32 s68, s{S_K1}, 1'); a('s_add_u32 s3, s3, s68'); a(f's_add_u32 s3, s3, {L_FL}')
    a('v_mul_u32_u24 v44, 28, v2'); a('v_lshl_add_u32 v44, v85, 1, v44'); a('v_add_u32 v198, s3, v44')
    a(f's_mul_i32 s3, s{S_W}, {4*24576}'); a('v_mul_u32_u24 v199, 24576, v2'); a('v_lshl_add_u32 v199, v3, 4, v199'); a('v_add_u32 v199, s3, v199')
    a(f's_mul_i32 s78, s{S_K1}, {24*24576}'); a(f's_lshr_b32 s3, s{S_CT}, 2'); a('s_mul_i32 s3, s3, 3072'); a('s_add_u32 s78, s78, s3')
    a(f's_and_b32 s3, s{S_CT}, 3'); a('s_lshl_b32 s3, s3, 8'); a('s_add_u32 s78, s78, s3'); a(f's_add_u32 s78, s78, {FRB}')
    a(f's_lshr_b32 s76, s{S_W}, 2'); a('s_mul_i32 s76, s76, 80'); a(f's_lshr_b32 s3, s{S_NT}, 1'); a('s_add_u32 s76, s76, s3')
    a(f's_mul_i32 s77, s{S_W}, 12'); a(f's_lshr_b32 s3, s{S_CD}, 2'); a('s_add_u32 s77, s77, s3'); a('s_add_u32 s77, s77, 140')
    a('v_min_u32 v45, 15, v0')
    a('v_lshl_add_u32 v22, v45, 3, s76'); a('v_lshl_add_u32 v44, v45, 1, s77')
    a('v_cmp_gt_u32 vcc, 10, v45'); a('v_cndmask_b32 v22, v44, v22, vcc')
    if HS == 5:
        a(f's_lshl_b32 s3, s{S_G}, 2'); a('s_add_u32 s3, s3, 192'); a('v_and_b32 v44, 3, v0'); a('v_add_u32 v44, s3, v44')
        a('v_cmp_gt_u32 vcc, 16, v0'); a('v_cndmask_b32 v22, v44, v22, vcc')
    if FP0 == 2:
        a(f's_lshr_b32 s3, s{S_G}, 2'); a(f's_and_b32 s68, s{S_G}, 3'); a('s_lshl_b32 s68, s68, 6'); a('s_add_u32 s3, s3, s68')
        a('v_and_b32 v44, 7, v0'); a('v_lshl_add_u32 v44, v44, 3, s3'); a('v_bfe_u32 v45, v0, 3, 1'); a('v_lshl_add_u32 v44, v45, 2, v44')
        a('v_cmp_gt_u32 vcc, 16, v0'); a('v_cndmask_b32 v22, v44, v22, vcc')
    a('v_lshlrev_b32 v22, 7, v22')
    a(f's_mov_b32 s76, {FLG}')
    a('v_lshlrev_b32 v23, 28, v2'); a('v_lshl_add_u32 v23, v3, 2, v23')
    XO = 72; GR = 136
    for i in range(6): a(f'v_mov_b32 v{XO+i}, s{S_TAG}')
    a(f'v_mov_b32 v{GR+21}, s{S_TAG}'); a(f'v_mov_b32 v{GR+23}, s{S_TAG}')
    FO = 204
    for r in (3, 7, 10, 11): a(f'v_mov_b32 v{FO+r}, s{S_TAG}')
    a(f'v_mov_b32 v84, s{S_TAG}')
    S_PF = 94; S_HHB = S_IDX
    a(f's_lshr_b32 s80, s{S_W}, 2'); a(f's_and_b32 s81, s{S_W}, 3')
    a(f's_lshl_b32 s{S_PF}, s{S_G}, 1'); a(f's_add_u32 s{S_PF}, s{S_PF}, s80'); a(f's_lshl_b32 s{S_PF}, s{S_PF}, 8'); a(f's_lshl_b32 s68, s{S_NT}, 2')
    a(f's_add_u32 s{S_PF}, s{S_PF}, s68'); a(f's_add_u32 s{S_PF}, s{S_PF}, s81'); a(f's_lshl_b32 s{S_PF}, s{S_PF}, 7'); a(f's_add_u32 s{S_PF}, s{S_PF}, {FHH}')
    if o.get('prew', 0):
        a(f'v_not_b32 v45, v84'); a('v_lshlrev_b32 v44, 13, v2'); a('v_lshl_add_u32 v44, v3, 2, v44')
        k.vmem(f'buffer_store_dword v45, v44, {WS}, s{S_PF} offen sc1', 'fill')
        a('s_mov_b64 exec, -1')
        def pw(base, idx):
            a(f's_lshl_b32 s68, {idx}, 7'); a(f's_add_u32 s68, s68, {base}')
            k.vmem(f'buffer_store_dword v45, v23, {WS}, s68 offen sc1', 'st', cond=True)
        only(f's_cmp_eq_u32 s{S_W}, 0', lambda: pw(FH2, f's{S_S2}'))
        only(f's_cmp_eq_u32 s{S_W}, 7', lambda: pw(FLG, 's2'))
    def prewrite(sb):
        a(f's_mul_i32 s3, s{S_W}, {256*XP}'); a(f's_add_u32 s3, s3, s{sb}')
        k.vmem(f'buffer_store_dwordx4 v[200:203], v1, {WS}, s3 offen sc1', 'fill')
        a('s_mov_b32 exec_hi, 0')
        k.vmem(f'buffer_store_dwordx4 v[200:203], v1, {WS}, s3 offen offset:1024 sc1', 'fill')
        a('s_mov_b32 exec_hi, -1')
    RES = o.get('res', 0)
    if RES:
        for i in range(4): a(f'v_not_b32 v{200+i}, v84')
    if RES & 1: prewrite(S_X1S)
    HINT = o.get('hx', 1)
    if HINT and o.get('prew', 0):
        only(f's_cmp_eq_u32 s{S_W}, 0', lambda: (pw(HN1, f's{S_S2}'), pw(HN2, 's2')))
    def hint_pub(base, idx):
        a('s_barrier')
        def f():
            a(f's_lshl_b32 s68, {idx}, 7'); a(f's_add_u32 s68, s68, {base}')
            k.vmem(f'buffer_store_dword v84, v23, {WS}, s68 offen sc1', 'st', cond=True)
        only(f's_cmp_eq_u32 s{S_W}, 0', f)
    def hint_wait(base, va, vd):
        ld = f'buffer_load_dword v{vd}, v{va}, {WS}, s80 offen sc1'
        a(f's_mov_b32 s80, {base}'); a('s_mov_b32 exec_hi, 0')
        k.vmem(ld, 'hn'); k.wait_vm('hn')
        rt, ok = k.lab('rt'), k.lab('ok')
        a(f'v_cmp_ne_u32 vcc, s{S_TAG}, v{vd}'); a(f's_cbranch_vccnz {rt}')
        a.label(ok)
        a('s_mov_b64 exec, -1')
        def retry():
            a.label(rt)
            a(f's_add_u32 s{S_CNT}, s{S_CNT}, 1'); a(f's_cmp_gt_u32 s{S_CNT}, {POLL_LIMIT}'); a('s_cbranch_scc1 L_end')
            a('s_mov_b64 exec, vcc'); a(f's_sleep {o.get("hsleep", 2)}')
            a(ld); a('s_waitcnt vmcnt(0)')
            a(f'v_cmp_ne_u32 vcc, s{S_TAG}, v{vd}'); a(f's_cbranch_vccnz {rt}')
            a(f's_branch {ok}')
        k.deferred.append(retry)
    p0(80, 160)
    XF = 100; AF = 24
    k.wait_vm('x')
    for j in range(5): unpack(XF + 2*j, XF + 2*j + 1, 10 + j)
    layernorm(XF, 44, 45)
    for j in range(5):
        a(f'v_cvt_pk_bf16_f32 v{XF+2*j}, v{XF+2*j}, 0'); a(f'v_cvt_pk_bf16_f32 v{XF+2*j+1}, 0, v{XF+2*j+1}')
    a(f'v_mov_b32 v{AF+3}, 0'); a(f'v_mov_b32 v{AF+7}, 0')
    k.stamp('LN1 done')
    k.wait_vm('fl')
    R0 = o.get('rps', 1) == 0
    if R0: k.wait_vm('rp')
    a('s_barrier')
    k.stamp('fl landed')
    FP = 176
    if R0: rp_tr()
    if not FD:
        for i in range(16): a(f'ds_read_u16 v{FP+i}, v198 offset:{1024*i}')
        a('s_waitcnt lgkmcnt(0)')
    TB1, TTW, TS2 = 48, 56, 112
    for i, n in enumerate(['B1re', 'B1im']): k.tload(TB1 + 4*i, n)
    for i, n in enumerate(['TW1c0', 'TW1c1', 'TW1s0', 'TW1s1']): k.tload(TTW + 4*i, n)
    for i, n in enumerate(['S2Clo', 'S2Slo', 'S2nSlo', 'S2Chi', 'S2Shi', 'S2nChi']): k.tload(TS2 + 4*i, n)
    for i in range(0 if FD else 8): a(f'v_lshl_or_b32 v{FO+4*(i//3)+i%3}, v{FP+8+i}, 16, v{FP+i}')
    def fl_stores():
        for h in range(3): k.vmem(f'buffer_store_dwordx4 {vr(FO+4*h,4)}, v199, {WS}, s78 offen offset:{1024*h} sc1', 'st', cond=not FLA)
    FLA = o.get('fla', 1)
    if not FLA: only(f's_cmp_lt_u32 s{S_W}, 6', fl_stores)
    if RES & 4: prewrite(S_X1S)
    if o.get('pre0'): a(f's_sleep {o["pre0"]}')
    k.stamp('pre gather')
    def g_loads():
        for i in range(5): k.vmem(f'buffer_load_dwordx4 {vr(GR+4*i,4)}, v20, {WS}, s70 offen offset:{256*i} sc1', 'g')
        only('s_cmp_lt_u32 s72, 80', lambda: k.vmem(f'buffer_load_dwordx4 {vr(GR+20,4)}, v20, {WS}, s74 offen sc1', 'g', cond=True))
    g_loads()
    if FLA and not FD:
        a(f's_cmp_lt_u32 s{S_W}, 6'); a(f's_cselect_b32 s78, s78, {WS_SIZE}')
        if FLA == 2: a('s_barrier')
        fl_stores()
    if R0: rp_stores()
    if RPE == 4:
        if o.get('gbar', 1): a('s_barrier')
        rp_dma()
    checked(g_loads, 'g', [GR + 2*t + 1 for t in range(12)], 45)
    k.stamp('gather ok')
    for i in range(6): a(f'v_permlane32_swap_b32 v{GR+4*i}, v{GR+4*i+2}')
    for i in range(6): a(f'v_add_f32 v{GR+4*i}, v{GR+4*i}, v{GR+4*i+2}')
    for i in range(6): a(f'v_add_f32_dpp v{GR+4*i}, v{GR+4*i}, v{GR+4*i} row_ror:8 row_mask:0xf bank_mask:0xf')
    for i in range(6): a(f'v_cvt_pk_bf16_f32 v{GR+4*i}, 0, v{GR+4*i}')
    for i in range(6): a(f'v_add_f32 v{GR+4*i}, s{71 if i < 5 else 73}, v{GR+4*i}')
    for i in range(6):
        a(f'v_cvt_pk_bf16_f32 v{GR+4*i}, v{GR+4*i}, v{GR+4*i}')
        a(f'ds_write_b16 v21, v{GR+4*i} offset:{L_MOD + 64*i if i < 5 else L_FFT + 16384}')
    a('s_waitcnt lgkmcnt(0)'); a('s_barrier')
    k.stamp('mod gathered')
    SA, CA = 32, 42
    for j in range(5): a(f'ds_read_b32 v{SA+2*j}, v4 offset:{L_MOD + 64*j}')
    for j in range(5): a(f'ds_read_b32 v{CA+j}, v4 offset:{L_MOD + 1280 + 64*j}')
    if RPE != 4 and not R0: rp_tr()
    l = k.lab('h2'); a('s_cmp_ge_u32 s72, 80'); a(f's_cbranch_scc1 {l}')
    a(f's_mul_i32 s3, s{S_W}, 320'); a(f'v_and_b32 v{GR+4}, 7, v0'); a(f'v_lshl_add_u32 v{GR+5}, v{GR+4}, 3, s3')
    a(f'ds_read_b64 {vr(GR+6,2)}, v{GR+5} offset:{L_FFT + 16384}')
    a(f'v_lshlrev_b32 v{GR+4}, 4, v{GR+4}')
    a('s_waitcnt lgkmcnt(0)')
    a(f'v_mov_b32 v{GR}, v{GR+6}'); a(f'v_mov_b32 v{GR+2}, v{GR+7}')
    k.vmem(f'buffer_store_dwordx4 {vr(GR,4)}, v{GR+4}, {WS}, s75 offen sc1', 'st', cond=True)
    a.label(l)
    a('s_waitcnt lgkmcnt(0)')
    for j in range(5): unpack(SA + 2*j, SA + 2*j + 1, SA + 2*j)
    for j in range(5):
        for t in range(2): a(f'v_dot2_f32_bf16 v{XF+2*j+t}, v{CA+j}, v{XF+2*j+t}, v{SA+2*j+t}')
    for t in range(2):
        a(f'v_cvt_pk_bf16_f32 v{AF+4*t}, v{XF+t}, v{XF+2+t}'); a(f'v_cvt_pk_bf16_f32 v{AF+4*t+1}, v{XF+4+t}, v{XF+6+t}')
        a(f'v_cvt_pk_bf16_f32 v{AF+4*t+2}, v{XF+8+t}, 0')
    D1 = 32
    for t in range(2):
        for ri in range(2):
            a(f'v_mfma_f32_16x16x32_bf16 {vr(D1+8*ri+4*t,4)}, {vr(AF+4*t,4)}, {vr(TB1+4*ri,4)}, 0')
    def wflag():
        a(f's_lshl_b32 s68, s2, 7'); a(f's_add_u32 s68, s68, {FLG}')
        k.vmem(f'buffer_store_dword v84, v23, {WS}, s68 offen sc1', 'st', cond=True)
    RPS = o.get('rps', 1) if RPE != 4 else o.get('rps', 3)
    if RPS == 1: rp_stores()
    def cmul_pk(ore, oim, re, im, c, s, fwd):
        a(f'v_pk_mul_f32 {vr(ore,2)}, {vr(re,2)}, {vr(c,2)}'); a(f'v_pk_mul_f32 {vr(oim,2)}, {vr(im,2)}, {vr(c,2)}')
        n1 = '' if fwd else ' neg_lo:[1,0,0] neg_hi:[1,0,0]'
        n2 = ' neg_lo:[1,0,0] neg_hi:[1,0,0]' if fwd else ''
        return [f'v_pk_fma_f32 {vr(ore,2)}, {vr(im,2)}, {vr(s,2)}, {vr(ore,2)}{n1}', f'v_pk_fma_f32 {vr(oim,2)}, {vr(re,2)}, {vr(s,2)}, {vr(oim,2)}{n2}']
    TPr, TPi = 100, 88
    later = []
    for h in range(4): later += cmul_pk(TPr + 2*h, TPi + 2*h, D1 + 2*h, D1 + 8 + 2*h, TTW + 2*h, TTW + 8 + 2*h, True)
    for s in later: a(s)
    for ri, base in ((0, TPr), (1, TPi)):
        for j in range(4): a(f'v_cvt_pk_bf16_f32 v{AF+4*ri+j}, v{base+j}, v{base+4+j}')
    mats = {(0, 0): (0, 1), (0, 1): (2, 0), (1, 0): (3, 4), (1, 1): (4, 5)}
    for st in range(2):
        for h in range(2):
            for ri in range(2):
                d = vr(D1 + 8*h + 4*ri, 4)
                a(f'v_mfma_f32_16x16x32_bf16 {d}, {vr(TS2+4*mats[(h,ri)][st],4)}, {vr(AF+4*st,4)}, {d if st else 0}')
    TP = 100
    for h in range(2):
        for j in range(4): a(f'v_cvt_pk_bf16_f32 v{TP+4*h+j}, v{D1+8*h+j}, v{D1+8*h+4+j}')
        if h == 0:
            a(f'ds_write2_b32 v{LA_LO}, v{TP}, v{TP+1} offset0:0 offset1:40'); a(f'ds_write2_b32 v{LA_LO}, v{TP+2}, v{TP+3} offset0:80 offset1:120')
    a(f'ds_write2_b32 v{LA_HI}, v{TP+4}, v{TP+5} offset0:120 offset1:80'); a(f'ds_write2_b32 v{LA_HI}, v{TP+6}, v{TP+7} offset0:40 offset1:0')
    if R0: k.wait_vm('rps')
    a('s_waitcnt lgkmcnt(0)'); a('s_barrier')
    for t in range(3): a(f'ds_read_b64 {vr(AF+2*t,2)}, v{LA_RD} offset:{896*t}')
    if R0: only(f's_cmp_eq_u32 s{S_W}, 7', wflag)
    for t in range(3):
        a(f's_waitcnt lgkmcnt({2-t})')
        a(f'v_mfma_f32_16x16x16_bf16 {vr(D1+4*t,4)}, {vr(EM,2)}, {vr(AF+2*t,2)}, 0')
    a(f's_mov_b64 exec, {sr(S_DM,2)}')
    for t in range(3):
        for e in range(2): a(f'v_cvt_pk_bf16_f32 v{XO+2*t+e}, v{D1+4*t+2*e}, v{D1+4*t+2*e+1}')
    a('s_mov_b64 exec, -1')
    for t in range(3):
        for e in range(2):
            k.vmem(f'buffer_store_dword v{XO+2*t+e}, v{6+e}, {WS}, s{S_X1S} offen offset:{512*t} sc1', 'st')
    if RPS == 3: k.wait_vm('rp')
    EF = o.get('ef', 0)
    if EF: k.wait_vm('rps')
    if HINT: hint_pub(HN1, f's{S_S2}')
    elif RPS == 3: a('s_barrier')
    if EF: only(f's_cmp_eq_u32 s{S_W}, 7', wflag)
    k.stamp('P1 done')
    if RPS == 2: a('s_barrier'); rp_stores()
    if RPS == 3: rp_tr(); a('s_waitcnt lgkmcnt(0)'); rp_stores()
    if CT: ctouch(86)
    if FP0 == 2:
        if not HINT and o.get('fbar', 1): a('s_barrier')
        h2_fill()
    elif not HINT and o.get('fbar', 0): a('s_barrier')
    HN = o.get('hsn', [4, 0, 0])
    if HS == 1: hh_fill(0, HN[0])
    PC = o.get('pc', 0)
    if PC:
        m = (1 << ((min(PC, 12) + 2) // 3)) - 1
        if PC > 12: m |= ((1 << ((PC - 12 + 4) // 5)) - 1) << 10
        a(f'v_mov_b32 v82, s{S_TAG}'); a(f's_mov_b64 exec, {m}')
        fl_ = lambda: k.vmem(f'buffer_load_dword v82, v22, {WS}, s76 offen sc1', 'flg')
        fl_(); checked(fl_, 'flg', [82], 83)
        a('s_mov_b64 exec, -1')
        bg('w1', PC)
    pf0 = dict(bgs)
    vm_at_branch = list(k.vm)

    TW2, TF, WF, FIN = 48, 88, 112, 248
    lnw, lp3 = k.lab('nw'), k.lab('p3')
    def flag_load(): k.vmem(f'buffer_load_dword v82, v22, {WS}, s76 offen sc1', 'flg')
    a(f's_lshl_b32 s3, s{S_W}, 10'); a('v_add_u32 v20, s3, v1'); a('v_min_u32 v21, 2032, v20'); a(f's_mov_b32 s70, {MODG}'); a(f's_mov_b32 s71, {MODG+8192}')
    def fin_loads():
        k.vmem(f'buffer_load_dwordx4 {vr(FIN,4)}, v20, {WS}, s70 offen sc1', 'fin')
        k.vmem(f'buffer_load_dwordx4 {vr(FIN+4,4)}, v21, {WS}, s71 offen sc1', 'fin')
    def fin_commit():
        checked(fin_loads, 'fin', [FIN + 1, FIN + 3, FIN + 5, FIN + 7], 83)
        a(f'v_mov_b32 v{FIN+1}, v{FIN+2}'); a(f'v_mov_b32 v{FIN+5}, v{FIN+6}'); a('v_lshrrev_b32 v20, 1, v20'); a('v_lshrrev_b32 v21, 1, v21')
        a(f'ds_write_b64 v20, {vr(FIN,2)} offset:{L_MOD+2560}'); a(f'ds_write_b64 v21, {vr(FIN+4,2)} offset:{L_MOD+2560+4096}')
    a(f's_cmp_ge_u32 s{S_CT}, {NCT}'); a(f's_cbranch_scc1 {lnw}')
    a(f's_mul_i32 s78, s{S_K1}, 24'); a(f's_add_u32 s78, s78, s{S_CT}'); a('s_mul_i32 s78, s78, 24576'); a(f's_mul_i32 s3, s{S_W}, 3072')
    a('s_add_u32 s78, s78, s3'); a(f's_add_u32 s78, s78, {FRB}')
    WP = 64
    def f_loads():
        for h in range(3): k.vmem(f'buffer_load_dwordx4 {vr(WP+4*h,4)}, v1, {WS}, s78 offen offset:{1024*h} sc1', 'wf')
    if FD:
        a(f'v_mul_u32_u24 v44, {256*642}, v2'); a('v_lshl_add_u32 v44, v85, 1, v44')
        a(f's_mul_i32 s3, s{S_W}, {16*642}'); a('v_add_u32 v44, s3, v44'); a(f'v_add_u32 v45, {8*642}, v44')
        a(f's_mul_i32 s68, s{S_K1}, 642'); a(f's_mul_i32 s69, s{S_CT}, 28'); a('s_add_u32 s68, s68, s69')
        for mt in range(2):
            for e in range(2):
                a(f's_add_u32 s3, s68, {(1024*mt + 128*e)*642}')
                for be in range(2):
                    i = 4*be + 2*mt + e
                    k.vmem(f'buffer_load_ushort v{WF+2*i}, v{44+be}, {sr(S_WR,4)}, s3 offen', 'wf')
                    k.vmem(f'buffer_load_ushort v{WF+2*i+1}, v{44+be}, {sr(S_WI,4)}, s3 offen', 'wf')
    else: f_loads()
    for i, n in enumerate(['F16f0', 'F16f1', 'F16p0', 'F16p1', 'F16i0', 'F16i1']): k.tload(TF + 4*i, n)
    a(f's_lshl_b32 s68, s{S_W}, 1'); a('s_add_u32 s69, s68, 1')
    for i in range(4):
        a(f'v_lshl_add_u32 v46, v2, 1, {8*(i//2) + i%2}')
        for x in range(2):
            d = TW2 + 2*(4*x + i)
            a(f'v_mul_u32_u24 v{d}, s{68+x}, v46'); a(f'v_cvt_f32_u32 v{d}, v{d}'); a(f'v_mul_f32 v{d}, 0x3b800000, v{d}')
            a(f'v_sin_f32 v{d+1}, v{d}'); a(f'v_cos_f32 v{d}, v{d}')
    LW2, LR2 = 15, 16
    a(f's_lshr_b32 s68, s{S_W}, 1'); a('s_lshl_b32 s68, s68, 8'); a(f's_and_b32 s69, s{S_W}, 1'); a('s_lshl_b32 s69, s69, 3')
    a('s_add_u32 s68, s68, s69'); a(f's_add_u32 s68, s68, {L_FFT}')
    a(f'v_lshlrev_b32 v{LW2}, 11, v2'); a(f'v_lshl_add_u32 v{LW2}, v3, 4, v{LW2}'); a(f'v_add_u32 v{LW2}, s68, v{LW2}')
    a(f's_lshl_b32 s68, s{S_W}, 11'); a(f's_add_u32 s68, s68, {L_FFT}'); a(f'v_add_u32 v{LR2}, s68, v1')
    for i in range(4): a(f's_add_u32 s{72+i}, s{S_P2B}, {X1 + i*16*XP}')
    XO2 = 128
    for i in range(8): a(f'v_mov_b32 v{XO2+i}, s{S_TG2}')
    if FD:
        k.wait_vm('wf')
        for i in range(16): a(f'v_lshlrev_b32 v{WF+i}, 16, v{WF+i}')
    else:
        checked(f_loads, 'wf', [WP + 3, WP + 7, WP + 11], 83)
        for i in range(8): unpack(WF + 2*i, WF + 2*i + 1, WP + 4*(i//3) + i%3)
    if o.get('pre1'): a(f's_sleep {o["pre1"]}')
    if o.get('dr1'): k.wait_all(); a('s_barrier')
    k.stamp('P2 prework')
    if HINT:
        a('v_lshrrev_b32 v32, 1, v0'); a('v_lshlrev_b32 v32, 4, v32'); a('v_and_b32 v33, 1, v0'); a(f's_lshl_b32 s3, s{S_W}, 1')
        a('v_add3_u32 v32, v32, v33, s3'); a('v_lshlrev_b32 v32, 7, v32')
        hint_wait(HN1, 32, 33); k.stamp('hint1')
    BF = 24
    x1l = [(BF + 4*ue + i, f'buffer_load_dword v{BF+4*ue+i}, v8, {WS}, s{72+i} offen offset:{XP*ue} sc1') for i in range(4) for ue in range(2)]
    def x1_loads():
        for r, t in x1l: k.vmem(t, 'x1')
    x1_loads()
    if HS == 3: hh_fill()
    if HS == 1: hh_fill(HN[0], HN[0] + HN[1])
    checked(x1_loads, 'x1', [BF + t for t in range(8)], 44, True, 'lgkmcnt(0)', x1l)
    k.stamp('X1 ok')
    D = 32; PK = 64; CM = 72
    B2 = o.get('b2', [0, 0, 0, 0])
    def stage(matf):
        for x in range(2):
            for mt in range(2):
                a(f'v_mfma_f32_16x16x32_bf16 {vr(D+8*x+4*mt,4)}, {vr(matf(mt),4)}, {vr(BF+4*x,4)}, 0')
    def cmul8(tw, mode):
        neg = 'neg_hi:[1,0,0]' if mode == 'conj' else 'neg_lo:[1,0,0]'
        for half in range(2):
            for q in range(4):
                i = 4*half + q
                a(f'v_pk_mul_f32 {vr(CM+2*q,2)}, {vr(D+2*i,2)}, {vr(tw+2*i,2)} op_sel:[0,0] op_sel_hi:[1,0]')
            for q in range(4):
                i = 4*half + q
                a(f'v_pk_fma_f32 {vr(D+2*i,2)}, {vr(D+2*i,2)}, {vr(tw+2*i,2)}, {vr(CM+2*q,2)} op_sel:[1,1,0] op_sel_hi:[0,1,1] {neg}')
    def exchange(off, mid):
        for mt in range(2):
            for e in range(2):
                for x in range(2):
                    a(f'v_cvt_pk_bf16_f32 v{PK+4*mt+2*e+x}, v{D+8*x+4*mt+2*e}, v{D+8*x+4*mt+2*e+1}')
                a(f'ds_write_b64 v{LW2}, {vr(PK+4*mt+2*e,2)} offset:{off + (8*mt+e)*1024}')
        a('s_waitcnt lgkmcnt(0)'); a('s_barrier')
        for x in range(2): a(f'ds_read_b128 {vr(BF+4*x,4)}, v{LR2} offset:{off + 1024*x}')
        mid()
        a('s_waitcnt lgkmcnt(0)')
    stage(lambda mt: TF + 4*mt)
    if EF: flag_load()
    fin_loads()
    cmul8(TW2, 'conj')
    if EF: exchange(16384, lambda: (checked(flag_load, 'flg', [82], 83), bg('w1', B2[0])))
    elif R0: exchange(16384, lambda: None)
    else: exchange(16384, lambda: only(f's_cmp_eq_u32 s{S_W}, 7', wflag) if RPS < 4 else rp_tr())
    if RPS == 5: rp_stores()
    stage(lambda mt: TF + 4*mt)
    cmul8(WF, 'mul')
    for i in range(8): a(f'v_cvt_pk_bf16_f32 v{BF+i}, v{D+2*i}, v{D+2*i+1}')
    stage(lambda mt: TF + 8 + 4*mt)
    fin_commit()
    cmul8(TW2, 'mul')
    def buddy():
        a('s_lshl_b32 s68, s2, 7'); a(f's_add_u32 s68, s68, {HN2}')
        k.vmem(f'buffer_store_dword v84, v23, {WS}, s68 offen sc1', 'st', cond=True)
    BUD = not (HINT & 2)
    exchange(0, lambda: only('s_cmp_lt_u32 s2, 72', lambda: only(f's_cmp_eq_u32 s{S_W}, 0', buddy)) if BUD and not o.get('bud') else None)
    stage(lambda mt: TF + 16 + 4*mt)
    a(f's_mov_b64 exec, {sr(S_DM,2)}')
    for i in range(8): a(f'v_cvt_pk_bf16_f32 v{XO2+i}, v{D+2*i}, v{D+2*i+1}')
    a('s_mov_b64 exec, -1')
    for mt in range(2):
        for e in range(2):
            a(f's_add_u32 s3, s{S_P2B}, {X2 + (8*mt+e)*16*XP}')
            for ue in range(2):
                k.vmem(f'buffer_store_dword v{XO2+4*ue+2*mt+e}, v9, {WS}, s3 offen offset:{XP*ue} sc1', 'st')
    if HINT & 2: hint_pub(HN2, 's2')
    if BUD and o.get('bud'): only('s_cmp_lt_u32 s2, 72', lambda: only(f's_cmp_eq_u32 s{S_W}, {o["bud"] - 1}', buddy))
    if RPS == 4: rp_stores()
    k.stamp('P2 done')
    bg('w1', B2[3])
    a(f's_branch {lp3}')
    a.label(lnw)
    nb = dict(bgs); bgs.update(pf0); k.vm = []
    k.vm = vm_at_branch
    def nw_fill():
        if not HINT: a('s_barrier')
        a('s_sub_u32 s80, s2, 192'); a('s_lshl_b32 s80, s80, 3'); a(f's_add_u32 s80, s80, s{S_W}')
        for base, n in ((H2, 5), (HH, 12)):
            a(f's_mul_i32 s3, s80, {1024*n}'); a(f's_add_u32 s3, s3, {base}')
            for j in range(n):
                k.vmem(f'buffer_store_dwordx4 v[200:203], v1, {WS}, s3 offen offset:{1024*(j%4)} sc1', 'fill', cond=True)
                if j % 4 == 3: a('s_add_u32 s3, s3, 4096')
    if HS == 5: only('s_cmp_ge_u32 s2, 192', nw_fill)
    if o.get('pren'): a(f's_sleep {o["pren"]}')
    fin_loads()
    fin_commit()
    a('s_waitcnt lgkmcnt(0)'); a('s_barrier')
    if EF or R0: pass
    elif RPS < 4: only(f's_cmp_eq_u32 s{S_W}, 7', wflag)
    else: rp_tr(); a('s_waitcnt lgkmcnt(0)'); rp_stores()
    if HS == 3: hh_fill()
    if HS == 1: hh_fill(HN[0], 4)
    k.stamp('repack done')
    if EF:
        flag_load(); checked(flag_load, 'flg', [82], 83)
        bg('w1', nb['pf'])
        def warm():
            for base, lo, hi in ((S_BGE, nb['w1'], o.get('wm1', 0)), (S_BG2E, 0, o.get('wm2', 0))):
                for j in range(lo, hi):
                    if j == lo or j % 4 == 0: a(f's_sub_u32 s3, s{base}, {30720 - 4096*(j//4)}')
                    k.vmem(f'buffer_load_dwordx4 v[252:255], v1, {WS}, s3 offen offset:{1024*(j%4)} sc1', 'wm', cond=True)
        only(f's_cmp_ge_u32 s{S_CT}, 24', warm)
    bgs.update(nb)
    a.label(lp3)

    if HS == 2: hh_fill()
    if HS == 1: only(f's_cmp_lt_u32 s{S_CT}, {NCT}', lambda: hh_fill(HN[0] + HN[1], 4)) if HN[2] else None
    a('v_mov_b32 v17, v22')
    TI1, TT3, TI2 = 48, 88, 80
    TI2 = 128
    for t in range(2):
        for tp in range(2):
            for ri in range(2): k.tload(TI1 + 4*(4*t + 2*tp + ri), f'I1_{t}{tp}{ri}')
    for i, n in enumerate(['TW3c0', 'TW3c1', 'TW3s0', 'TW3s1']): k.tload(TT3 + 4*i, n)
    for i in range(2): k.tload(TI2 + 4*i, f'I2_{i}')
    ematrix(EM, True, 44)
    GA, SB, CBP = 104, 114, 80
    for base, col in ((GA, 1280), (SB, 1920)):
        for j in range(5): a(f'ds_read_b32 v{base+2*j}, v4 offset:{L_MOD + 2*col + 64*j}')
    for j in range(5): a(f'ds_read_b32 v{CBP+j}, v4 offset:{L_MOD + 2*2560 + 64*j}')
    a('s_waitcnt lgkmcnt(0)')
    for base in (GA, SB):
        for j in range(5): unpack(base + 2*j, base + 2*j + 1, base + 2*j)
    P3P = 344
    L_P3 = L_FFT + 16384
    LW3, LR0, LR1 = 20, 21, 22
    a(f'v_mul_u32_u24 v{LW3}, {2*P3P*4}, v2'); a(f'v_lshl_add_u32 v{LW3}, v85, 2, v{LW3}')
    a(f's_mul_i32 s68, s{S_W}, 56'); a(f's_add_u32 s68, s68, {L_P3}'); a(f'v_add_u32 v{LW3}, s68, v{LW3}')
    a(f'v_mov_b32 v{LR0}, {L_FFT + 16384 + 11264}'); a(f'v_cndmask_b32 v{LW3}, v{LW3}, v{LR0}, {sr(S_TM,2)}')
    a(f's_mul_i32 s68, s{S_W}, {P3P*4}'); a(f's_add_u32 s68, s68, {L_P3}')
    a(f'v_add_u32 v{LR0}, s68, v4'); a(f's_add_u32 s68, s68, {260*4}'); a(f'v_sub_u32 v{LR1}, s68, v4')
    a(f's_lshl_b32 s72, s{S_S2}, 3'); a(f's_add_u32 s72, s72, s{S_W}')
    a('s_lshr_b32 s73, s72, 2'); a('s_sub_u32 s73, 0, s73'); a('s_and_b32 s73, s73, 3'); a('s_lshl_b32 s73, s73, 4')
    a('v_lshlrev_b32 v15, 2, v3'); a('v_xor_b32 v15, s73, v15'); a('v_mul_u32_u24 v16, 40960, v2'); a('v_add_u32 v15, v15, v16')
    a(f's_lshl_b32 s74, s{S_W}, 6'); a(f's_add_u32 s74, s74, s{S_H2W}')
    a(f's_mul_i32 s73, s{S_W}, {256*XP}'); a(f's_add_u32 s73, s73, s{S_X1S}')
    if BUD:
        def bw():
            def f():
                a('s_lshl_b32 s80, s2, 7'); a(f's_add_u32 s80, s80, {HN2 - 184*128}'); a('v_mov_b32 v33, 0')
                ld = lambda: k.vmem(f'buffer_load_dword v32, v33, {WS}, s80 offen sc1', 'bd', cond=True)
                keep = list(k.vm); ld(); checked(ld, 'bd', [32], 32); k.vm = keep
            only(f's_cmp_eq_u32 s{S_W}, 0', f)
            a('s_barrier')
            if o.get('preb'): a(f's_sleep {o["preb"]}')
        only(f's_cmp_ge_u32 s{S_CT}, {NCT}', bw)
    if o.get('pre2'): a(f's_sleep {o["pre2"]}')
    if o.get('dr2'): k.wait_all()
    if o.get('dr2') == 2: a('s_barrier')
    if RPS >= 4:
        a(f'v_mov_b32 v86, s{S_TAG}')
        only(f's_cmp_eq_u32 s{S_W}, 7', lambda: (a('s_lshl_b32 s68, s2, 7'), a(f's_add_u32 s68, s68, {FLG}'), k.vmem(f'buffer_store_dword v86, v23, {WS}, s68 offen sc1', 'st', cond=True)))
    k.stamp('P3 prework')
    x2l = [(BF + 2*t + e, f'buffer_load_dword v{BF+2*t+e}, v{6+e}, {WS}, s{S_X2} offen offset:{512*t} sc1') for t in range(2) for e in range(2)]
    x2l += [(BF + 4 + e, f'buffer_load_dword v{BF+4+e}, v{6+e}, {WS}, s{S_X2T} offen offset:512 sc1') for e in range(2)]
    def x2_loads():
        for r, t in x2l: k.vmem(t, 'x2')
    if HINT & 2:
        a(f's_cmp_lt_u32 s{S_W}, 7'); a('s_cselect_b32 s3, 2, 1'); a('v_lshrrev_b32 v32, 3, v0'); a('v_min_u32 v32, s3, v32')
        a('v_lshlrev_b32 v32, 6, v32'); a('v_and_b32 v33, 7, v0'); a(f's_lshl_b32 s3, s{S_W}, 3')
        a('v_add3_u32 v32, v32, v33, s3'); a('v_lshlrev_b32 v32, 7, v32')
        hint_wait(HN2, 32, 33); k.stamp('hint2')
    x2_loads()
    checked(x2_loads, 'x2', [BF + t for t in range(6)], 44, True, '', x2l, S_TG2)
    k.stamp('X2 ok')
    B3 = o.get('b3', [0, 6, 0, 0])
    for t in range(3): a(f'v_mfma_f32_16x16x16_bf16 {vr(D+4*t,4)}, {vr(EM,2)}, {vr(BF+2*t,2)}, 0')
    wf_ld = lambda: k.vmem(f'buffer_load_dword v87, v17, {WS}, s76 offen sc1', 'flg2')
    WFC = o.get('wfc', 0) if not EF else -1
    bgw(B3[0])
    if CT: ctouch(126)
    if WFC == 0: wf_ld()
    for t in range(3):
        for e in range(2):
            a(f'v_cvt_pk_bf16_f32 v{BF+2*t+e}, v{D+4*t+2*e}, v{D+4*t+2*e+1}')
            a(f'ds_write_b32 v{LW3}, v{BF+2*t+e} offset:{448*t + P3P*4*e}')
    a('s_waitcnt lgkmcnt(0)'); a('s_barrier')
    a(f'ds_read2_b32 {vr(BF,2)}, v{LR0} offset0:0 offset1:20'); a(f'ds_read2_b32 {vr(BF+2,2)}, v{LR0} offset0:40 offset1:60')
    a(f'ds_read2_b32 {vr(BF+4,2)}, v{LR1} offset0:60 offset1:40'); a(f'ds_read2_b32 {vr(BF+6,2)}, v{LR1} offset0:20 offset1:0')
    bgw(B3[1])
    for t in range(2):
        a(f's_waitcnt lgkmcnt({2-2*t})')
        for tp in range(2):
            for ri in range(2):
                d = vr(D + 8*ri + 4*tp, 4)
                a(f'v_mfma_f32_16x16x32_bf16 {d}, {vr(BF+4*t,4)}, {vr(TI1+4*(4*t+2*tp+ri),4)}, {d if t else 0}')
    UP = 48
    XF = 64
    later = []
    for h in range(4): later += cmul_pk(UP + 2*h, UP + 8 + 2*h, D + 2*h, D + 8 + 2*h, TT3 + 2*h, TT3 + 8 + 2*h, False)
    for s in later: a(s)
    for i in range(8): a(f'v_cvt_pk_bf16_f32 v{BF+i}, v{UP+i}, v{UP+8+i}')
    for tp in range(2):
        for qt in range(2):
            a(f'v_mfma_f32_16x16x32_bf16 {vr(D+8*tp+4*qt,4)}, {vr(TI2+4*qt,4)}, {vr(BF+4*tp,4)}, 0')
    for j in range(5): unpack(XF + 2*j, XF + 2*j + 1, 10 + j)
    if WFC == 0: checked(wf_ld, 'flg2', [87], 87)
    bgw(B3[2])
    for j in range(5):
        for t in range(2): a(f'v_fmac_f32 v{XF+2*j+t}, v{GA+2*j+t}, v{D+8*t+j}')
    for j in range(5): a(f'v_cvt_pk_bf16_f32 v{10+j}, v{XF+2*j}, v{XF+2*j+1}')
    for j in range(5): unpack(XF + 2*j, XF + 2*j + 1, 10 + j)
    layernorm(XF, 44, 45)
    CB = 48
    for j in range(5): unpack(CB + 2*j, CB + 2*j + 1, CBP + j)
    for i in range(10): a(f'v_fma_f32 v{XF+i}, v{XF+i}, v{CB+i}, v{SB+i}')
    for j in range(5):
        a(f'v_cvt_pk_bf16_f32 v{BF+j}, v{XF+2*j}, v{XF+2*j+1}')
        k.vmem(f'buffer_store_dword v{BF+j}, v15, {WS}, s74 offen sc1', 'h2')
        if j < 4: a('s_add_u32 s74, s74, 8192')
    a('s_barrier')
    def hint():
        a(f's_lshl_b32 s68, s{S_S2}, 7'); a(f's_add_u32 s68, s68, {FH2}'); a(f'v_mov_b32 v86, s{S_TAG}')
        k.vmem(f'buffer_store_dword v86, v23, {WS}, s68 offen sc1', 'st', cond=True)
    if o.get('hint', 1): only(f's_cmp_eq_u32 s{S_W}, 0', hint)
    for j in range(5):
        k.vmem(f'buffer_store_dword v{10+j}, v4, {WS}, s73 offen offset:{64*j} sc1', 'h2')
    k.stamp('P3 done')
    if WFC == 1: wf_ld(); checked(wf_ld, 'flg2', [87], 87)
    AK, AS = [2, 3], [4, 6]
    XW, XRD, HO1, HO2, DV, FPV, FPD, FLV, TAGV, CKA, CK, DV2 = 7, 8, 9, 10, 11, 12, 13, 14, 15, 16, 18, 19
    def acc(p, i): return 20 + (2*p + i)*12
    FR = [128, 132, 248, 252]
    L_C = 8192
    S_CO = 84
    S_CF, S_RT0, S_LW = 74, 77, 78
    S_AK = 8
    a(f's_lshr_b32 s72, s{S_W}, 2'); a(f's_and_b32 s73, s{S_W}, 3')
    a(f's_mul_i32 s68, s{S_G}, 163840'); a('s_mul_i32 s69, s72, 81920'); a('s_add_u32 s68, s68, s69'); a('s_lshl_b32 s69, s73, 11')
    a('s_add_u32 s68, s68, s69'); a(f's_add_u32 s68, s68, {H2}'); a('s_add_u32 s69, s68, 81920')
    a(f's_lshl_b32 s70, s{S_ROT}, 13'); a(f's_add_u32 s{S_CO}, s68, s70')
    for c in range(1, 10):
        a(f's_add_u32 s{S_CO+c}, s{S_CO+c-1}, 8192'); a(f's_cmp_ge_u32 s{S_CO+c}, s69'); a(f's_cselect_b32 s{S_CO+c}, s68, s{S_CO+c}')
    a(f's_lshl_b32 s{S_LW}, s{S_W}, 11'); a(f's_add_u32 s{S_LW}, s{S_LW}, {L_C}')
    a(f's_mul_i32 s68, s{S_W}, 3072'); a(f'v_add_u32 v{XW}, s68, v1')
    a(f's_xor_b32 s68, s{S_W}, 4'); a('s_mul_i32 s68, s68, 3072'); a(f'v_add_u32 v{XRD}, s68, v1')
    a('v_lshrrev_b32 v48, 1, v2'); a('v_and_b32 v49, 1, v2')
    a(f'v_lshlrev_b32 v{HO1}, 4, v3'); a(f'v_lshl_add_u32 v{HO1}, v49, 3, v{HO1}')
    a(f'v_add_u32 v{HO1}, s68, v{HO1}')
    a(f'v_lshl_add_u32 v{HO2}, v48, 2, v{HO1}'); a(f'v_lshl_add_u32 v{HO1}, v48, 8, v{HO1}')
    a(f'v_and_b32 v{FPV}, 7, v0'); a(f'v_lshlrev_b32 v{FPV}, 7, v{FPV}'); a('v_bfe_u32 v48, v0, 3, 1'); a(f'v_lshl_add_u32 v{FPV}, v48, 13, v{FPV}')
    a(f'v_mov_b32 v{FLV}, v23'); a(f'v_mov_b32 v{TAGV}, s{S_TAG}')
    a(f'v_bfe_u32 v48, v0, 1, 4'); a('v_and_b32 v49, 31, v0'); a('v_lshlrev_b32 v49, 6, v49'); a(f'v_lshl_add_u32 v{CKA}, v48, 2, v49')
    a(f'v_add_u32 v{CKA}, s{S_LW}, v{CKA}'); a(f'v_add_u32 v{CKA+1}, 65536, v{CKA}')
    a('v_lshrrev_b32 v48, 2, v3'); a('v_sub_u32 v48, 0, v48'); a('v_and_b32 v48, 3, v48'); a('v_xor_b32 v48, v48, v2')
    a('v_lshlrev_b32 v48, 4, v48'); a('v_lshl_add_u32 v48, v3, 6, v48')
    a('s_mul_i32 s68, s72, 9216'); a(f's_add_u32 s68, s68, {L_C}'); a('s_mul_i32 s69, s72, 7168'); a(f's_add_u32 s69, s69, {L_C + 1024}')
    a(f'v_add_u32 v{AK[0]}, s68, v48'); a(f'v_add_u32 v{AS[0]}, s69, v48')
    a(f'v_add_u32 v{AK[1]}, 65536, v{AK[0]}'); a(f'v_add_u32 v{AS[1]}, 65536, v{AS[0]}')
    a(f's_lshl_b32 s{S_CF}, s{S_R}, 15'); a(f's_lshl_b32 s68, s{S_W}, 10'); a(f's_add_u32 s{S_CF}, s{S_CF}, s68'); a(f's_add_u32 s{S_CF}, s{S_CF}, {FHH}')
    a(f's_lshr_b32 s{S_RT0}, s{S_R}, 1'); a(f's_lshl_b32 s{S_RT0}, s{S_RT0}, 3'); a(f's_and_b32 s68, s{S_R}, 1'); a(f's_add_u32 s{S_RT0}, s{S_RT0}, s68')
    a(f's_mul_i32 s68, s{S_RT0}, 49152'); a(f's_mul_i32 s69, s{S_W}, 6144'); a('s_add_u32 s68, s68, s69'); a(f's_add_u32 s68, s68, {HH}'); a('s_add_u32 s69, s68, 6144')
    a(f's_lshl_b32 s70, s{S_ROT2}, 10'); a(f's_add_u32 s{S_AK}, s68, s70')
    for c in range(1, 6):
        a(f's_add_u32 s{S_AK+c}, s{S_AK+c-1}, 1024'); a(f's_cmp_ge_u32 s{S_AK+c}, s69'); a(f's_cselect_b32 s{S_AK+c}, s68, s{S_AK+c}')
    only('s_cmp_eq_u32 s2, 0', lambda: only(f's_cmp_eq_u32 s{S_W}, 0', lambda: k.vmem(f'buffer_store_dword v{TAGV}, v{FLV}, {WS}, {EPOCH} offen sc1', 'st', cond=True)))
    bgw(o.get('bh', 6))
    bgw(max(0, o.get('nw1', 0) - bgs['pf']))
    if o.get('pre3'): a(f's_sleep {o["pre3"]}')
    if o.get('dr3'): k.wait_all()
    if o.get('dr3') == 2: a('s_barrier')
    k.stamp('g1 setup')
    def I(text): return lambda: a(text)
    def V(text, tag): return lambda: k.vmem(text, tag)
    def DS(text, tag): return lambda: k.ds(text, tag)
    def dma1(c, h):
        a(f's_add_u32 m0, s{S_LW}, {(c % 8)*16384}')
        k.vmem(f'buffer_load_dwordx4 v1, {WS}, s{S_CO+c} offen offset:{1024*h} sc1 lds', f'a{c}' if h else f'a{c}h')
    def ck_read(c):
        sl = c % 8
        k.ds(f'ds_read_b32 v{CK}, v{CKA + sl//4} offset:{(sl % 4)*16384}', 'ck')
    def ck_cmp(): a(f'v_cmp_eq_u32 s[82:83], -1, v{CK}')
    def ck_branch(c):
        ok = k.lab('ok'); rt = k.lab('rt')
        a('s_cmp_lg_u64 s[82:83], 0'); a(f's_cbranch_scc1 {rt}')
        a.label(ok)
        def retry():
            a.label(rt)
            a(f's_add_u32 s{S_CNT}, s{S_CNT}, 1'); a(f's_cmp_gt_u32 s{S_CNT}, {POLL_LIMIT}'); a(f's_cbranch_scc1 {ok}')
            a(f's_sleep {o.get("sleep", 4)}')
            dma1(c, 0); dma1(c, 1); a('s_waitcnt vmcnt(0)'); ck_read(c); a('s_waitcnt lgkmcnt(0)'); ck_cmp()
            a('s_cmp_lg_u64 s[82:83], 0'); a(f's_cbranch_scc1 {rt}')
            a(f's_branch {ok}')
        k.deferred.append(retry)
    k.lg = []
    if o.get('hint', 1):
        a(f's_lshl_b32 s70, s{S_G}, 2'); a('s_add_u32 s70, s70, s73'); a('s_lshl_b32 s70, s70, 9'); a(f's_add_u32 s70, s70, {FH2}')
        a(f'v_and_b32 v{DV}, 0x180, v{FPV}')
        def h_load(): k.vmem(f'buffer_load_dword v{FPD}, v{DV}, {WS}, s70 offen sc1', 'hint')
        h_load()
        checked(h_load, 'hint', [FPD], FPD)
        k.stamp('hint ok')
    dma1(0, 0); dma1(0, 1)
    while bgs['w1'] < 3: wload('w1')
    dma1(1, 0); dma1(1, 1)
    while bgs['w1'] < 6: wload('w1')
    k.wait_vm('a0'); ck_read(0); k.wait_lg('ck'); ck_cmp(); ck_branch(0)
    a('s_barrier')
    k.stamp('A0 landed')
    EX = [139264, 40960, 65536, 98304]
    DVP = [DV, CK]; SV = CKA
    def ep_reads(p):
        dv = DVP[p % 2]
        return [I(f'v_add_u32 v{dv}, {EX[p]}, v{XRD}')] + [DS(f'ds_read_b128 {vr(acc(p,1)+4*T,4)}, v{dv} offset:{1024*T}', 'ep') for T in (2, 0, 1)]
    def ep_ops(p):
        ac = acc(p, 0); RX = acc(p, 1)
        ops = [f'v_add_f32 v{ac+i}, v{ac+i}, v{RX+i}' for i in (8, 9, 10, 11, 0, 1, 2, 3, 4, 5, 6, 7)]
        ops += [f'v_permlane32_swap_b32 v{ac+8}, v{ac+10}', f'v_permlane32_swap_b32 v{ac+9}, v{ac+11}']
        ops += [f'v_add_u32 v{RX}, {EX[p]}, v{HO1}', f'v_add_u32 v{RX+1}, {EX[p]}, v{HO2}']
        ops += [f'v_mul_f32 v{ac+i}, v{ac+i}, v{ac+4+i}' for i in range(4)]
        ops += [f'v_mul_f32 v{ac+8+i}, v{ac+8+i}, v{ac+10+i}' for i in range(2)]
        ops += [f'v_cvt_pk_bf16_f32 v{RX+2}, v{ac}, v{ac+1}', f'v_cvt_pk_bf16_f32 v{RX+3}, v{ac+2}, v{ac+3}', f'v_cvt_pk_bf16_f32 v{RX+4}, v{ac+8}, v{ac+9}']
        ops = [lambda: k.wait_lg('ep')] + [I(x) for x in ops]
        ops += [DS(f'ds_write_b64 v{RX}, {vr(RX+2,2)}', 'tw'), DS(f'ds_write_b32 v{RX+1}, v{RX+4} offset:512', 'tw'),
                DS(f'ds_read_b128 {vr(RX+8,4)}, v{DVP[p%2]}', f'tr{p}')]
        return ops
    def ep_store(p):
        RX = acc(p, 1)
        k.wait_lg(f'tr{p}'); a(f's_add_u32 s69, s{S_HHB}, {p*2*49152}')
        k.vmem(f'buffer_store_dwordx4 {vr(RX+8,4)}, v{SV}, {WS}, s69 offen sc1', f'hh{p}')
    def x_writes(p):
        return [I(f'v_add_u32 v{DV2}, {EX[p]}, v{XW}')] + [DS(f'ds_write_b128 v{DV2}, {vr(acc(p,1)+4*T,4)} offset:{1024*T}', 'xw') for T in range(3)]
    def pub_hh(p):
        k.wait_vm(f'hh{p}')
        a(f's_add_u32 s69, s{S_PF}, {p*8192}')
        k.vmem(f'buffer_store_dword v{TAGV}, v{FLV}, {WS}, s69 offen sc1', 'st')
    def hf_load(i, pair=False):
        if o.get('nohf'): return
        a(f's_add_u32 s70, s{S_CF}, {i*8192}')
        k.vmem(f'buffer_load_dword v{FPD}, v{FPV if pair else FP1}, {WS}, s70 offen sc1', f'hf{i}')
    def hf_check(i, pair=False):
        if o.get('nohf'): return
        checked(lambda: hf_load(i, pair), f'hf{i}', [FPD], FPD)
    FP1 = 0
    A0Q = [172, 176, 180, 136, 140, 144]
    AFR = [A0Q, [148, 152, 156, 52, 56, 60], [68 + 4*q for q in range(6)], A0Q]
    def a2_1(i, ksl):
        if o.get('noa2'): return
        a(f's_add_u32 s71, s{S_AK+ksl}, {i*98304}')
        k.vmem(f'buffer_load_dwordx4 {vr(AFR[i][ksl],4)}, v1, {WS}, s71 offen sc1', f'h{i}_{ksl}')

    GAP = o.get('gap', 36)
    NS = 360 + GAP
    slots = [[] for _ in range(NS + 1)]
    def put(s0, ops, per=1, stride=1):
        s_ = s0
        for j in range(0, len(ops), per):
            slots[s_] += ops[j:j+per]; s_ += stride
        return s_
    KO = 7
    seq = [(s_, p, i) for s_ in range(KO) for p in range(4) for i in range(2)]
    for p in range(4):
        for s_ in range(KO, 10): seq += [(s_, p, 1), (s_, p, 0)] if s_ == 9 else [(s_, p, 0), (s_, p, 1)]
    PD = o.get('pd', 3)
    def rd1(q):
        s_, p, i = seq[q]; sl = s_ % 8
        k.ds(f'ds_read_b128 {vr(FR[q%4],4)}, v{(AK if i == 0 else AS)[sl//4]} offset:{(sl%4)*16384 + p*2048}', f'f{q}')
    for q in range(80 - PD): slots[3*q].append(lambda q=q: rd1(q + PD))
    VAL = o.get('val', [[1], [2], [3], [4], [5, 6], [7, 8], [9]])
    BS = 24 - 3*PD - 1
    for s_ in range(KO):
        b0 = 24*s_
        G1X = o.get('g1x', '')
        for n_, c in enumerate(reversed(VAL[s_]) if 'c' not in G1X else []):
            t0 = b0 + BS - 7 - 7*n_
            slots[t0] += [lambda c=c: k.wait_vm(f'a{c}'), lambda c=c: ck_read(c)]
            slots[t0 + 4] += [lambda: k.wait_lg('ck'), ck_cmp]
            slots[t0 + 6] += [lambda c=c: ck_branch(c)]
        if 'b' not in G1X: slots[b0 + BS] += [I('s_barrier')]
    stream = []
    def add_w1(upto, earliest):
        pass
    nw = bgs['w1']
    cand = [(0, 'a', 2), (0, 'w', 2), (0, 'a', 3), (0, 'w', 3), (0, 'a', 4), (24, 'w', 4), (24, 'a', 5), (24, 'a', 6), (48, 'w', 5), (48, 'a', 7), (24 + BS + 1, 'a', 8),
            (72, 'w', 6), (48 + BS + 1, 'a', 9), (96, 'w', 7), (120, 'w', 8), (144, 'w', 9)]
    for e_, kind, c in cand:
        if kind == 'a': stream += [(e_, lambda c=c: dma1(c, 0)), (e_, lambda c=c: dma1(c, 1))]
        else: stream += [(e_, lambda: wload('w1')) for j in range(3*c, 3*c + 3) if j >= nw]
    PACE = o.get('pace', 3)
    busy = set(); cur = 1
    for e_, f in stream:
        cur = max(cur, e_ + 1)
        while cur % 3 == 0: cur += 1
        if 'v' not in G1X: slots[cur].append(f)
        busy.add(cur); cur += PACE
    tb = 24*KO
    EPE = []
    for p in range(4):
        b0 = tb + 18*(p + 1)
        XB = o.get('xb', 5)
        if 'e' in G1X and p < 3:
            EPE.append(b0 + 24); continue
        put(b0 - 1, x_writes(p), per=1)
        slots[b0 + XB] += [lambda: k.wait_lg('xw'), I('s_barrier')]
        e = put(b0 + XB, ep_reads(p), per=2)
        e = put(e + o.get('epd', 2), ep_ops(p), per=o.get('epr', 3))
        e += o.get('eps', 4); slots[e].append(lambda p=p: ep_store(p)); e += 1
        EPE.append(e)
    assert EPE[3] <= 269 + GAP, EPE
    w2e = [0]*19 + [tb]*3 + [EPE[0]]*6 + [EPE[1]]*2
    cur = o.get('w2s', 80); P2 = o.get('pace2', 4)
    HOLD = o.get('hold', 0)
    for j in range(bgs['w2'], 30 - HOLD):
        cur = max(cur, w2e[j])
        while cur % 3 == 0 or any(abs(cur - b) < 2 for b in busy): cur += 1
        slots[cur].append(lambda: wload('w2')); cur += P2
    W2END = cur
    RW, RR, OV, XV, GB, XR1, RR2 = 2, 3, 4, 6, 112, 16, 7
    RED = [8192, 8192 + 43520]; RB = 43520
    AC2 = [[128, 132, 248, 252, 64], [92, 96, 100, 104, 108]]
    OST = o.get('ost', '')
    g2 = 240 + GAP
    T0, T1 = 16, 17
    setup = [f's_mul_i32 s68, s{S_W}, 5440', f's_add_u32 s68, s68, {RED[0]}', f'v_lshrrev_b32 v{RW}, 8, v1',
             f'v_lshl_add_u32 v{RW}, v{RW}, 4, v1', f'v_add_u32 v{RW}, s68, v{RW}',
             f'v_lshrrev_b32 v{T0}, 4, v1', f'v_min_u32 v{T0}, 39, v{T0}', f'v_subrev_u32 v{T1}, 20, v{T0}', f'v_min_u32 v{T1}, v{T1}, v{T0}',
             f'v_sub_u32 v{T0}, v{T0}, v{T1}', f'v_lshrrev_b32 v{T0}, 4, v{T0}', f's_lshl_b32 s68, s{S_W}, 1', f'v_add_u32 v{T0}, s68, v{T0}',
             f'v_mul_u32_u24 v{RR}, 272, v{T1}', f'v_lshl_add_u32 v{RR}, v{T0}, 4, v{RR}', f'v_add_u32 v{RR}, {RED[0]}, v{RR}',
             f's_mul_i32 s68, s{S_CD}, 160', f'v_lshl_add_u32 v{T1}, v{T1}, 3, s68',
             f'v_and_b32 v{OV}, 7, v{T0}', f'v_lshrrev_b32 v{T0}, 3, v{T0}', f'v_lshl_add_u32 v{T0}, v{OV}, 8, v{T0}',
             f'v_mul_u32_u24 v{XV}, {XP}, v{T0}', f'v_add_u32 v{XV}, v{XV}, v{T1}', f'v_mul_u32_u24 v{OV}, 1280, v{T0}', f'v_add_u32 v{OV}, v{OV}, v{T1}', 's_mov_b32 s82, 0', 's_mov_b32 s83, 0xffffff00', f'v_mov_b32 v{T0}, 0x40000000', f'v_cndmask_b32 v{OV}, v{OV}, v{T0}, s[82:83]',
             f'v_cndmask_b32 v{XV}, v{XV}, v{T0}, s[82:83]',
             f's_mul_i32 s72, s{S_RT0}, {2*XP}', f's_add_u32 s72, s72, {X1}', f's_mul_i32 s73, s{S_RT0}, {2*1280}', f'v_add_u32 v{RR2}, {RB}, v{RR}']
    e = put(EPE[3] - 1, [I(x) for x in setup[:3]], per=3)
    e = put(EPE[3], [I(x) for x in setup[3:]], per=3)
    assert e <= g2 + 38, e
    slots[e] += [DS(f'ds_read_b64 {vr(GB+2,2)}, v{T1} offset:{L_MOD + 2*3200}', 'gb')]
    slots[g2 + 43] += [lambda: k.wait_lg('gb'), lambda: unpack(GB, GB + 1, GB + 2), lambda: unpack(GB + 2, GB + 3, GB + 3)]
    def red_tmp(i): return [AC2[i % 2][0], AC2[i % 2][1]] + AFR[i]
    def red_write(i): return [DS(f'ds_write_b128 v{RW}, {vr(AC2[i%2][T],4)} offset:{(i%2)*RB + 1088*T}', 'rw') for T in range(5)]
    def red_reads(i):
        rv = RR2 if i % 2 else RR
        return [DS(f'ds_read_b128 {vr(t,4)}, v{rv} offset:{5440*ww}', f'rr{ww//2}') for ww, t in enumerate(red_tmp(i))]
    def red_ops(i, pk=False):
        t = red_tmp(i); q = AC2[i % 2][2]
        def add(d, x, y):
            if pk: return [I(f'v_pk_add_f32 {vr(d+c,2)}, {vr(x+c,2)}, {vr(y+c,2)}') for c in (0, 2)]
            return [I(f'v_add_f32 v{d+c}, v{x+c}, v{y+c}') for c in range(4)]
        W = lambda n: [lambda: k.wait_lg(f'rr{n}')]
        ops = W(0) + add(q, t[0], t[1]) + W(1) + add(t[2], t[2], t[3]) + W(2) + add(t[4], t[4], t[5]) + add(q, q, t[2]) + W(3) + add(t[6], t[6], t[7])
        ops += add(q, q, t[4]) + add(q, q, t[6])
        x = XR1 + 2*(i % 2); u = t[2]
        ops += [lambda: k.wait_vm(f'xr{i}'), I(f'v_lshlrev_b32 v{u}, 16, v{x}'), I(f'v_and_b32 v{u+1}, 0xffff0000, v{x}'), I(f'v_lshlrev_b32 v{u+2}, 16, v{x+1}'), I(f'v_and_b32 v{u+3}, 0xffff0000, v{x+1}')]
        ops += [I(f'v_fmac_f32 v{u+c}, v{GB+c}, v{q+c}') for c in range(4)]
        ops += [I(f'v_cvt_pk_bf16_f32 v{x}, v{u}, v{u+1}'), I(f'v_cvt_pk_bf16_f32 v{x+1}, v{u+2}, v{u+3}'),
                lambda: (a(f's_add_u32 s69, s73, {i*4*1280}'), k.vmem(f'buffer_store_dwordx2 {vr(x,2)}, v{OV}, {sr(S_OUT,4)}, s69 offen {OST}', 'out'))]
        return ops
    def xr_load(i):
        a(f's_add_u32 s69, s72, {i*4*XP}')
        k.vmem(f'buffer_load_dwordx2 {vr(XR1+2*(i%2),2)}, v{XV}, {WS}, s69 offen sc1', f'xr{i}')
    for i in range(1, 4):
        b0 = g2 + 30*i
        X = o.get('g2x', '')
        if 'w' not in X: put(b0 + 1, red_write(i - 1), stride=o.get('rws', 1))
        if 'b' not in X: slots[b0 + 9] += [lambda: k.wait_lg('rw'), I('s_barrier')]
        if 'r' not in X: put(b0 + 9, red_reads(i - 1), per=2)
        slots[b0 + 10].append(lambda i=i: xr_load(i - 1))
        e = put(b0 + 14, red_ops(i - 1, 'p' in X), per=2 if 'p' in X else 3) if 'v' not in X else b0
        assert e <= b0 + 30, e
    slots[g2 + 90 + 20].append(lambda: xr_load(3))
    slots[1].append(I(f'v_and_b32 v{FP1}, 0x380, v{FPV}'))
    if CT:
        for s_ in o.get('cts', [62, 134]): slots[s_].append(lambda: ctouch(FPD))
    slots[163] += [I(f'v_add_u32 v{SV}, 256, v1'), I(f'v_lshrrev_b32 v{SV}, 10, v{SV}')]
    slots[164] += [I(f'v_lshl_add_u32 v{SV}, v{SV}, 30, v1')]
    e3 = EPE[3]
    if not HS:
        slots[EPE[0] + o.get('pubd', 16)].append(lambda: pub_hh(0))
        slots[min(EPE[1] + o.get('pubd', 16), 240)].append(lambda: pub_hh(1))
        if not HOLD:
            slots[o.get('hf0', 246)].append(lambda: hf_load(0))
            ST = (lambda n: (lambda: k.stamp(n))) if o.get('st3') else (lambda n: (lambda: None))
            slots[240].append(ST('s240')); slots[245].append(ST('bar3')); slots[249].append(ST('epw'))
            slots[e3] = [ST('hh3 st'), lambda: hf_check(0), ST('chk0')] + [lambda j=j: a2_1(0, j) for j in range(6)] + [ST('a0 iss'), lambda: pub_hh(2), ST('pub2')] + slots[e3]
            slots[g2].append(ST('a0 arr'))
            slots[g2 - 1] += [lambda: hf_load(1)]
            s1 = g2 + o.get('c1', 3)
            slots[s1] += [lambda: pub_hh(3), lambda: hf_check(1), ST('chk1')]
            put(s1 + 1, [lambda j=j: a2_1(1, j) for j in range(6)], stride=1)
            h2 = g2 + o.get('hf2', 14)
            slots[h2].append(lambda: hf_load(2))
            slots[h2 + o.get('hf2d', 12)].append(lambda: hf_check(2))
            put(h2 + o.get('hf2d', 12) + 1, [lambda j=j: a2_1(2, j) for j in range(6)], stride=1)
            slots[g2 + o.get('hf3', 48)].append(lambda: hf_load(3))
            slots[g2 + 59].append(lambda: hf_check(3))
            put(g2 + 60, [lambda j=j: a2_1(3, j) for j in range(6)], stride=1)
        else:
            assert W2END <= e3 + 4
            slots[e3] = [lambda: hf_load(0, True)] + [lambda: wload('w2') for _ in range(HOLD)] + slots[e3]
            slots[g2 - 1] += [lambda: k.wait_vm('hf0'), lambda: pub_hh(2), lambda: pub_hh(3), lambda: hf_check(0, True)]
            slots[g2 - 1] += [lambda j=j: a2_1(0, j) for j in range(6)] + [lambda j=j: a2_1(1, j) for j in range(6)]
            h2 = g2 + o.get('hf2', 6)
            slots[h2].append(lambda: hf_load(2, True))
            slots[h2 + o.get('hf2d', 16)].append(lambda: hf_check(2, True))
            put(h2 + o.get('hf2d', 16) + 1, [lambda j=j: a2_1(2, j) for j in range(6)], stride=1)
            put(g2 + 60, [lambda j=j: a2_1(3, j) for j in range(6)], stride=1)
    else:
        def a_chk1(i):
            q = AFR[i]
            k.wait_vm(f'h{i}_5')
            a(f'v_max3_u32 v{FPD}, v{q[0]}, v{q[1]}, v{q[2]}'); a(f'v_max3_u32 v{FPV}, v{q[3]}, v{q[4]}, v{q[5]}')
        def a_chk2(): a(f'v_max_u32 v{FPD}, v{FPD}, v{FPV}'); a(f'v_cmp_eq_u32 vcc, -1, v{FPD}')
        def a_chk3(i):
            ok = k.lab('ok'); rt = k.lab('rt')
            a(f's_cbranch_vccnz {rt}'); a.label(ok)
            def retry():
                a.label(rt)
                a(f's_add_u32 s{S_CNT}, s{S_CNT}, 1'); a(f's_cmp_gt_u32 s{S_CNT}, {POLL_LIMIT}'); a(f's_cbranch_scc1 {ok}')
                a(f's_sleep {o.get("sleep", 4)}')
                for j in range(6): a2_1(i, j)
                a_chk1(i); a_chk2()
                a(f's_cbranch_vccnz {rt}'); a(f's_branch {ok}')
            k.deferred.append(retry)
        AL = o.get('al', [235, e3, g2 + 8, g2 + 60])
        put(AL[0], [lambda j=j: a2_1(0, j) for j in range(6)])
        if AL[1] < g2: slots[AL[1]] = [lambda j=j: a2_1(1, j) for j in range(6)] + slots[AL[1]]
        else: put(AL[1], [lambda j=j: a2_1(1, j) for j in range(6)], stride=o.get('as1', 1))
        put(AL[2], [lambda j=j: a2_1(2, j) for j in range(6)], stride=o.get('as', 2))
        put(AL[3], [lambda j=j: a2_1(3, j) for j in range(6)], stride=1)
        for i in range(4):
            t = g2 + 30*i
            slots[t - 3].append(lambda i=i: a_chk1(i)); slots[t - 2].append(a_chk2); slots[t - 1].append(lambda i=i: a_chk3(i))
    print('EPE', EPE, 'W2END', W2END, 'stream end', max(busy))

    if o.get('ldonly'):
        for c in range(2, 10):
            dma1(c, 0); dma1(c, 1)
            for _ in range(3): wload('w1')
        k.wait_all(); a('s_barrier'); k.stamp('ld g1')
        while bgs['w2'] < 30: wload('w2')
        k.wait_all(); a('s_barrier'); k.stamp('ld w2')
        for i in range(4):
            for j in range(6): a2_1(i, j)
        k.wait_all(); a('s_barrier'); k.stamp('ld a2')
        bgs.update(w1=6, w2=0)
    for q in range(PD): rd1(q)
    for q, (s_, p, i) in enumerate(seq):
        k.wait_vm(f'w1_{3*s_+2}')
        k.wait_lg(f'f{q}')
        for T in range(3):
            d = vr(acc(p, i) + 4*T, 4)
            a(f'v_mfma_f32_16x16x32_bf16 {d}, {vr(w1reg(3*s_+T),4)}, {vr(FR[q%4],4)}, {d if s_ else 0}')
            for f in slots[3*q + T]: f()
        if q == 55 and o.get('st2'): k.stamp('g1 kout')
    k.stamp('g1 done')
    for s_ in range(240, g2):
        for f in slots[s_]: f()
        if s_ == g2 - 2 and o.get('st2'): k.stamp('ep3 done')
    if o.get('st2'): k.stamp('gap done')
    for i in range(4):
        for ksl in range(6):
            if i == 0: k.wait_vm(f'w2_{5*ksl+4}')
            k.wait_vm(f'h{i}_{ksl}')
            for T in range(5):
                d = vr(AC2[i % 2][T], 4)
                a(f'v_mfma_f32_16x16x32_bf16 {d}, {vr(w2reg(ksl*5+T),4)}, {vr(AFR[i][ksl],4)}, {d if ksl else 0}')
                for f in slots[g2 + 30*i + 5*ksl + T]: f()
        if o.get('st2') == 1: k.stamp(f'g2 tile{i}')
    for f in red_write(3): f()
    k.wait_lg('rw'); a('s_barrier')
    for f in red_reads(3) + red_ops(3, True): f()
    k.stamp('g2 done')
    if stamps:
        l = k.lab('st')
        a(f's_cmp_lg_u32 s{S_W}, {o.get("stw", 0)}'); a(f's_cbranch_scc1 {l}')
        a('s_lshl_b32 s68, s2, 8'); a(f's_add_u32 s68, s68, {STAMP}'); a('v_lshrrev_b32 v84, 2, v1')
        a(f'buffer_store_dword v{VST}, v84, {WS}, s68 offen')
        if o.get('dbg'):
            sel = o['dbg']
            a('s_mov_b32 s8, s98'); a('s_mov_b32 s9, s99'); a('s_mov_b32 s10, 256'); a('s_mov_b32 s11, 0x20000')
            a(f'v_readlane_b32 s68, v{VST}, 0'); a('s_not_b32 s68, s68'); a('v_mov_b32 v85, 0'); a('v_writelane_b32 v85, s68, 0')
            for i, st in enumerate(sel):
                a(f'v_readlane_b32 s68, v{VST}, {st}'); a(f'v_writelane_b32 v85, s68, {i+1}')
            a('s_mov_b64 exec, 0xffff')
            a('buffer_atomic_umax v85, v84, s[8:11], 0 offen')
        a.label(l)
    a.label('L_end')
    a('s_endpgm')
    for f in k.deferred: f()
    a.label('L_codeend')
    a('s_endpgm')
    return k

HEADER = open('cdna_kernels/' + NAME + '.s.ref').read().split('; @launch')[0]

def emit(path, stamps=False, opts=None):
    k = gen(stamps, opts)
    out = [HEADER + f'; @launch grid=(256,1,1) block=(512,1,1) lds={LDS_BYTES}\n']
    if stamps: out.append('; STAMPS: ' + '|'.join(k.stamp_names) + '\n')
    out.append('.amdgcn_target "amdgcn-amd-amdhsa--gfx950"\n.text\n')
    out.append(k.a.text())
    out.append('.p2align 10\n.type tab_data,@object\ntab_data:\n')
    nfr = len(k.T)
    data = np.zeros((nfr, 256), dtype=np.uint32)
    for n, i in k.fidx.items(): data[i] = k.T[n].reshape(-1)
    q = data.reshape(-1).view(np.uint64)
    for i in range(0, len(q), 8):
        out.append('.quad ' + ','.join('0x%x' % v for v in q[i:i+8]) + '\n')
    out.append(f'.size tab_data, {nfr*1024}\n')
    out.append(f'''.section .rodata,"a"
.p2align 6
.amdhsa_kernel {KN}
  .amdhsa_next_free_vgpr 256
  .amdhsa_next_free_sgpr 102
  .amdhsa_accum_offset 256
  .amdhsa_group_segment_fixed_size 0
  .amdhsa_kernarg_size 96
  .amdhsa_user_sgpr_count 2
  .amdhsa_user_sgpr_kernarg_segment_ptr 1
  .amdhsa_system_sgpr_workgroup_id_x 1
.end_amdhsa_kernel
''')
    open(path, 'w').write(''.join(out))
    import subprocess
    r = subprocess.run([sys.executable, 'cdna_unwritten_srd_check.py', path], capture_output=True, text=True)
    if r.returncode: print('CHECK FAILED', r.stdout[-1500:], r.stderr[-1500:])
    print(path, 'insts', k.a.ninst, 'nop states', k.a.nops, 'stamps', k.nstamp)

if __name__ == '__main__':
    import json
    opts = json.loads(sys.argv[1]) if len(sys.argv) > 1 else {}
    if len(sys.argv) > 2:
        emit(sys.argv[2], 'stamp' in sys.argv[2], opts)
    else:
        emit('cdna_kernels/' + NAME + '.s', False, opts)
        emit('k_stamp.s', True, opts)
```
